```python
import torch

def _softmax(x, axis=-1):
    return torch.softmax(x, dim=axis)
def _gelu(x):
    return torch.nn.functional.gelu(x, approximate="tanh")
def _silu(x):
    return torch.nn.functional.silu(x)
def _sigmoid(x):
    return torch.sigmoid(x)
def _layernorm(x, axis=-1, eps=1e-5):
    m = x.mean(dim=axis, keepdim=True)
    v = x.var(dim=axis, keepdim=True, unbiased=False)
    return (x - m) / torch.sqrt(v + eps)
def _scatter_add(tgt, idx, src, axis=0):
    return tgt.clone().index_add_(axis, idx, src)
def _segment_sum(src, seg, n):
    out = torch.zeros((n,) + src.shape[1:], dtype=src.dtype)
    return out.index_add_(0, seg, src)
def _pad(x, pw):
    flat = tuple(v for pair in reversed(pw) for v in pair)
    return torch.nn.functional.pad(x, flat)

kernel_name = 'gated_mix__ssm_conv_h3__compressed_kv_cla__prompt'

def setup_inputs():

    _w = (lambda a: (lambda t: t.to(torch.bfloat16) if t.is_floating_point() else t)(torch.as_tensor(a)))
    def _A_setup():
        B, S, D = 1, 2048, 576
        ks = 4
        return {
            "q": _w((lambda *s: torch.randn(*s, dtype=torch.bfloat16) * 0.05)(B, S, D)),
            "k": _w((lambda *s: torch.randn(*s, dtype=torch.bfloat16) * 0.4)(B, S, D)),
            "v": _w((lambda *s: torch.randn(*s, dtype=torch.bfloat16) * 0.4)(B, S, D)),
            "shift_k": _w((lambda *s: torch.randn(*s, dtype=torch.bfloat16) * 0.4)(D, ks) * 0.5),
            "ssm_k": _w((lambda *s: torch.randn(*s, dtype=torch.bfloat16) * 0.8)(D, S) * (1.0 / S ** 0.5)),
            "ssm_D": _w((lambda *s: torch.randn(*s, dtype=torch.bfloat16) * 0.4)(D)),
        }
    _A_in = _A_setup()

    def _B_setup():
        B, H, Sq, Sk, D, M = 1, 32, 2048, 2048, 128, 576
        Dc = 4 * D
        return {
            "x": _w((lambda *s: torch.randn(*s, dtype=torch.bfloat16) * 0.05)(B, Sq, M)),
            "c_kv": _w((lambda *s: torch.randn(*s, dtype=torch.bfloat16) * 0.4)(B, Sk, Dc)),
            "w_q": _w((lambda *s: torch.randn(*s, dtype=torch.bfloat16) * 6.4)(M, H, D) * (M ** -0.5)),
            "w_uk": _w((lambda *s: torch.randn(*s, dtype=torch.bfloat16) * 6.4)(Dc, H, D) * (Dc ** -0.5)),
            "w_uv": _w((lambda *s: torch.randn(*s, dtype=torch.bfloat16) * 0.4)(Dc, H, D) * (Dc ** -0.5)),
            "w_o": _w((lambda *s: torch.randn(*s, dtype=torch.bfloat16) * 0.4)(H, D, M) * ((H * D) ** -0.5)),
        }
    _B_in = _B_setup()

    return {
        "A_q": _A_in["q"],
        "A_k": _A_in["k"],
        "A_v": _A_in["v"],
        "A_shift_k": _A_in["shift_k"],
        "A_ssm_k": _A_in["ssm_k"],
        "A_ssm_D": _A_in["ssm_D"],
        "B_x": _B_in["x"],
        "B_c_kv": _B_in["c_kv"],
        "B_w_q": _B_in["w_q"],
        "B_w_uk": _B_in["w_uk"],
        "B_w_uv": _B_in["w_uv"],
        "B_w_o": _B_in["w_o"],
        "gate_w": _w((lambda *s: torch.randn(*s, dtype=torch.bfloat16) * 0.05)(576) * 16.0),
    }

def reference(A_q, A_k, A_v, A_shift_k, A_ssm_k, A_ssm_D, B_x, B_c_kv, B_w_q, B_w_uk, B_w_uv, B_w_o, gate_w):
    def _A_ref(q, k, v, shift_k, ssm_k, ssm_D):
        B, S, D = q.shape
        ks = shift_k.shape[-1]
        k_pad = _pad(k, ((0, 0), (ks - 1, 0), (0, 0)))
        k_shift = torch.zeros_like(k)
        for t in range(ks):
            k_shift = k_shift + k_pad[:, t:t + S, :] * shift_k[:, ks - 1 - t][None, None, :]
        kv = k_shift * v
        L = 2 * S
        kv_pad = _pad(kv, ((0, 0), (0, S), (0, 0)))
        kf_pad = _pad(ssm_k, ((0, 0), (0, S)))
        kv_f = (lambda x, axes=(-2,-1): torch.fft.rfft2(x.float(), dim=axes))(kv_pad[:, None, :, :], axes=(1, 2))
        kf_f = (lambda x, axes=(-2,-1): torch.fft.rfft2(x.float(), dim=axes))(kf_pad[:, None, :], axes=(1, 2))
        kf_f = (lambda x, *d: x.permute(*d))(kf_f, 1, 2, 0)
        y_f = kv_f * kf_f[None, :, :, :]
        y = (lambda x, s, axes=(-2,-1): torch.fft.irfft2(x, s=s, dim=axes).to(torch.bfloat16))(y_f, (1, L), axes=(1, 2))[:, 0, :S, :]
        y = y + kv * ssm_D[None, None, :]
        return q * y

    def _B_ref(x, c_kv, w_q, w_uk, w_uv, w_o):
        B, Sq, M = x.shape[0], x.shape[1], x.shape[2]
        Sk = c_kv.shape[1]
        H, D = w_q.shape[1], w_q.shape[2]
        q = torch.einsum("bqm,mhd->bhqd", x, w_q)
        k = torch.einsum("bkc,chd->bhkd", c_kv, w_uk)
        v = torch.einsum("bkc,chd->bhkd", c_kv, w_uv)
        scores = torch.einsum("bhqd,bhkd->bhqk", q, k) * (D ** -0.5)
        off = Sk - Sq
        qi = torch.arange(Sq)[:, None]
        kj = torch.arange(Sk)[None, :]
        cmask = kj <= (qi + off)
        scores = torch.where(cmask[None, None], scores, -1e9)
        p = _softmax(scores, axis=-1)
        ctx = torch.einsum("bhqk,bhkd->bhqd", p, v)
        return torch.einsum("bhqd,hdm->bqm", ctx, w_o)

    x = A_q
    g = _sigmoid((x * gate_w).sum(-1, keepdims=True))
    a = _A_ref(x, A_k, A_v, A_shift_k, A_ssm_k, A_ssm_D)
    b = _B_ref(x, B_c_kv, B_w_q, B_w_uk, B_w_uv, B_w_o)
    return g * a + (1 - g) * b
```

```python
import re

def R(t, b, n=1):
    return f"{t}{b}" if n == 1 else f"{t}[{b}:{b+n-1}]"
def V(b, n=1): return R('v', b, n)
def A(b, n=1): return R('a', b, n)
def S(b, n=1): return R('s', b, n)

_reg = re.compile(r'^(-|\|)?(?:abs\()?([vas])(?:(\d+)|\[(\d+):(\d+)\])\)?\|?$')
def regs_of(op):
    op = op.strip()
    if op in ('vcc', 'exec', 'm0', 'scc'):
        return [op]
    m = _reg.match(op)
    if not m:
        return []
    t = m.group(2)
    if m.group(3) is not None:
        return [(t, int(m.group(3)))]
    return [(t, i) for i in range(int(m.group(4)), int(m.group(5)) + 1)]

TRANS = ('v_exp_f32', 'v_log_f32', 'v_rcp_f32', 'v_rsq_f32', 'v_sqrt_f32', 'v_sin_f32', 'v_cos_f32')

class I:
    def __init__(self, text):
        self.text = text
        t = text.split(';')[0].strip()
        self.label = t.endswith(':')
        self.directive = t.startswith('.')
        parts = t.split(None, 1)
        self.op = parts[0] if parts else ''
        rest = parts[1] if len(parts) > 1 else ''
        ops = [o.strip() for o in rest.split(',')]
        self.mods = ''
        if ops and ' ' in ops[-1]:
            a, b = ops[-1].split(None, 1)
            ops[-1] = a; self.mods = b
        self.ops = ops
        op = self.op
        self.w = []; self.r = []
        self.kind = 'other'
        rg = [regs_of(o) for o in ops]
        flat = lambda l: [x for y in l for x in y]
        if self.label or self.directive or not op:
            self.kind = 'none'
        elif op.startswith('v_mfma'):
            self.kind = 'mfma'; self.w = rg[0]; self.ra = rg[1]; self.rb = rg[2]; self.rc = rg[3]
            self.r = rg[1] + rg[2] + rg[3]
            self.passes = 4 if '16x16x32' in op else 8
        elif op.startswith('ds_read') or op.startswith('ds_bpermute') or op.startswith('ds_swizzle'):
            self.kind = 'ds'; self.w = rg[0]; self.r = flat(rg[1:])
        elif op.startswith('ds_'):
            self.kind = 'ds'; self.r = flat(rg)
        elif op.startswith('buffer_load') or op.startswith('global_load'):
            self.kind = 'vmem'
            if ' lds' in (' ' + self.mods) or '_lds_' in op:
                self.r = flat(rg) + ['m0']; self.dma = True
            else:
                self.w = rg[0]; self.r = flat(rg[1:])
        elif op.startswith('buffer_atomic'):
            self.kind = 'vmem'; self.r = flat(rg)
            if 'sc0' in self.mods: self.w = rg[0]
        elif op.startswith('buffer_store') or op.startswith('global_store'):
            self.kind = 'vmem'; self.r = flat(rg); self.store = rg[0]
        elif op.startswith('buffer_'):
            self.kind = 'vmem'
        elif op.startswith('v_'):
            self.kind = 'trans' if op.replace('_e32', '').replace('_e64', '') in TRANS else 'valu'
            if op.startswith('v_permlane') and 'swap' in op:
                self.w = rg[0] + rg[1]; self.r = rg[0] + rg[1]
            elif op.startswith('v_cmp'):
                self.w = rg[0]; self.r = flat(rg[1:])
            elif op.startswith(('v_add_co', 'v_sub_co', 'v_addc_co')):
                self.w = rg[0] + rg[1]; self.r = flat(rg[2:])
            else:
                self.w = rg[0]; self.r = flat(rg[1:])
                if op.startswith(('v_fmac', 'v_dot2c')) or 'dpp' in op or 'row_' in self.mods or 'quad_perm' in self.mods:
                    self.r = self.r + rg[0]
        elif op.startswith('s_'):
            self.kind = 'salu'
            if op in ('s_waitcnt', 's_barrier', 's_nop', 's_endpgm', 's_sleep', 's_setprio') or op.startswith(('s_cbranch', 's_branch')):
                pass
            elif op.startswith('s_cmp'):
                self.r = flat(rg)
            elif op.startswith('s_load'):
                self.kind = 'smem'; self.w = rg[0]; self.r = flat(rg[1:])
            else:
                self.w = rg[0]; self.r = flat(rg[1:])
    def states(self):
        if self.kind == 'none': return 0
        if self.op == 's_nop': return int(self.ops[0], 0) + 1
        return 1
    def cost(self):
        if self.kind == 'none': return 0
        if self.kind == 'trans': return 2
        if self.op == 's_nop': return int(self.ops[0], 0) + 1
        return 1

def check_hazards(lines, name=''):
    ins = [I(l) for l in lines]
    ins = [i for i in ins if i.kind != 'none']
    probs = []
    pos = []; p = 0
    for i in ins:
        pos.append(p); p += i.states()
    isv = lambda r: isinstance(r, tuple) and r[0] in 'va'
    iss = lambda r: (isinstance(r, tuple) and r[0] == 's') or r == 'vcc'
    for k, c in enumerate(ins):
        for j in range(k - 1, max(-1, k - 24), -1):
            pr = ins[j]
            d = pos[k] - pos[j] - pr.states() if pr.op == 's_nop' else pos[k] - pos[j] - 1
            need = 0; why = ''
            pw = set(pr.w)
            if pr.kind == 'mfma':
                n_use = {4: 8, 8: 12}[pr.passes]; n_ov = {4: 6, 8: 10}[pr.passes]; n_war = {4: 3, 8: 7}[pr.passes]
                if c.kind == 'mfma':
                    if pw & set(c.ra + c.rb): need, why = n_use, 'mfma D->A/B'
                    elif pw & set(c.rc) and (pr.w != c.rc or pr.passes != c.passes): need, why = n_ov, 'mfma D->C partial'
                    elif pw & set(c.w) and not (pw & set(c.rc)): need, why = n_use, 'mfma WAW (no chain)'
                elif c.kind in ('valu', 'trans', 'ds', 'vmem'):
                    if pw & set(c.r + c.w): need, why = n_use, 'mfma D->valu/mem'
                    elif c.kind in ('valu', 'trans') and set(pr.rc) & set(c.w): need, why = n_war, 'mfma C WAR'
            elif pr.kind in ('valu', 'trans'):
                pv = set(r for r in pr.w if isv(r)); ps = set(r for r in pr.w if iss(r))
                if c.kind == 'mfma' and pv & set(c.r): need, why = 2, 'valu->mfma'
                if pr.kind == 'trans' and c.kind == 'valu' and pv & set(c.r): need, why = max(need, 1), 'trans->valu'
                if c.op.startswith('v_permlane') and pv & set(c.r): need, why = 2, 'valu->permlane'
                if c.op.startswith(('v_readfirstlane', 'v_readlane')) and pv & set(c.r): need, why = max(need, 1), 'valu->readlane'
                if ('dpp' in c.op or 'row_' in c.mods or 'quad_perm' in c.mods) and c.kind in ('valu', 'trans') and pv & set(c.r): need, why = 2, 'valu->dpp'
                if c.kind == 'vmem' and ps & set(c.r): need, why = 5, 'valu sgpr->vmem'
                if c.kind in ('valu', 'trans') and ps & set(c.r): need, why = max(need, 2), 'valu sgpr->valu'
            elif pr.kind == 'salu':
                if 'm0' in pr.w and getattr(c, 'dma', False): need, why = 1, 'm0->dma'
            elif pr.kind == 'vmem' and getattr(pr, 'store', None) and len(pr.store) >= 3:
                if c.kind in ('valu', 'trans') and set(pr.store) & set(c.w): need, why = 2, 'store data WAR'
                elif set(pr.store) & set(c.w): need, why = 1, 'store data WAR'
            if need > d:
                probs.append(f"{name}: {why}: need {need} have {d}: [{pr.text.strip()}] -> [{c.text.strip()}]")
    return probs

def check_lgkm(lines, name='', init=None):
    out = list(init or [])
    probs = []
    for l in lines:
        c = I(l)
        if c.kind == 'none': continue
        if c.op == 's_waitcnt':
            m = re.search(r'lgkmcnt\((\d+)\)', l)
            if m:
                n = int(m.group(1))
                if len(out) > n: out = out[len(out) - n:] if n else []
            continue
        touched = set(c.r) | set(c.w)
        for o in out:
            if o & touched:
                probs.append(f"{name}: lgkm not waited: [{l.strip()}]"); break
        if c.kind == 'ds': out.append(set(c.w))
        if c.kind == 'smem': out.append(set(c.w)); out.append(set(c.w))
    return probs

class Body:
    def __init__(self, mf, cap=2):
        self.mf = list(mf); self.n = len(mf); self.cap = cap
        self.first = [None] * self.n
        self.rest = [[] for _ in range(self.n)]
        self.pre = []
    def used(self, g):
        u = 0
        if self.first[g] is not None: u += 1
        for t in self.rest[g]:
            i = I(t)
            u += i.cost() + (1 if i.kind in ('ds', 'vmem') else 0)
        return u
    def room(self, g): return self.cap - self.used(g)
    def mem(self, g, text, hi=None):
        hi = self.n - 1 if hi is None else hi
        k = g
        while k <= hi and (self.first[k] is not None or self.room(k) < 1): k += 1
        if k > hi:
            k = g
            if self.first[k] is None: self.first[k] = text
            else: self.rest[k].insert(0, text)
            return k
        self.first[k] = text
        return k
    def put(self, g, text):
        self.rest[g].append(text); return g
    def fit(self, g, text, hi=None):
        hi = self.n - 1 if hi is None else hi
        c = I(text).cost(); k = g
        while k <= hi and self.room(k) < c: k += 1
        if k > hi: k = hi
        self.rest[k].append(text); return k
    def spread(self, items, lo, hi):
        items = [(x, lo) if isinstance(x, str) else x for x in items]
        if not items: return
        free = [max(0, self.room(g)) for g in range(lo, hi + 1)]
        tot = sum(I(t).cost() for t, _ in items); F = sum(free)
        ratio = min(1.0, tot / F) if F else 1.0
        k = 0; placed = 0.0; budget = 0.0
        for g in range(lo, hi + 1):
            budget += free[g - lo] * ratio
            while k < len(items):
                t, mg = items[k]; c = I(t).cost()
                if mg > g or self.room(g) < c: break
                if placed + c * 0.5 > budget + 0.75: break
                self.rest[g].append(t); placed += c; k += 1
        self.over = len(items) - k
        while k < len(items):
            self.rest[hi].append(items[k][0]); k += 1
    def lines(self):
        L = list(self.pre)
        for i in range(self.n):
            L.append(self.mf[i])
            if self.first[i] is not None: L.append(self.first[i])
            L += self.rest[i]
        return L
    def add_waits(self, init, minlat=6):
        ds = [(-100, set(s)) for s in init]
        for g in range(self.n):
            for t in ([self.first[g]] if self.first[g] else []) + self.rest[g]:
                i = I(t)
                if i.kind == 'ds': ds.append((g, set(i.w)))
        done = 0
        def issued_by(g):
            return sum(1 for x in ds if x[0] <= g)
        for i in range(self.n):
            if i > 0:
                for t in self.rest[i - 1]:
                    m = re.search(r's_waitcnt.*lgkmcnt\((\d+)\)', t)
                    if m: done = max(done, issued_by(i - 1) - int(m.group(1)))
            touched = set(I(self.mf[i]).r) | set(I(self.mf[i]).w)
            for t in ([self.first[i]] if self.first[i] else []) + self.rest[i]:
                ii = I(t)
                touched |= set(ii.r)
                if ii.kind != 'ds': touched |= set(ii.w)
            need = -1
            nb = issued_by(i - 1)
            for k in range(done, nb):
                if ds[k][1] & touched: need = k
            if need < 0: continue
            lo = max(ds[need][0] + minlat, 0)
            g = i - 1
            while g >= lo and (g >= 0 and self.room(g) < 1): g -= 1
            if g < lo or g < 0: g = i - 1
            nbg = issued_by(g)
            k = need
            while k + 1 < nbg and ds[k + 1][0] + minlat <= g: k += 1
            n = min(15, nbg - (k + 1))
            w = f"s_waitcnt lgkmcnt({n})"
            if g < 0: self.pre.append(w)
            else: self.rest[g].append(w)
            done = nbg - n
        for t in self.rest[self.n - 1]:
            m = re.search(r's_waitcnt.*lgkmcnt\((\d+)\)', t)
            if m: done = max(done, len(ds) - int(m.group(1)))
        return [x[1] for x in ds[done:]]
    def overflow(self):
        return sum(max(0, self.used(g) - self.cap) for g in range(self.n)) + len(self.pre)

def desc(name, nv=512, acc=256):
    return f""".p2align 6
.amdhsa_kernel {name}
  .amdhsa_next_free_vgpr {nv}
  .amdhsa_next_free_sgpr 102
  .amdhsa_accum_offset {acc}
  .amdhsa_group_segment_fixed_size 0
  .amdhsa_kernarg_size 128
  .amdhsa_user_sgpr_count 2
  .amdhsa_user_sgpr_kernarg_segment_ptr 1
  .amdhsa_system_sgpr_workgroup_id_x 1
  .amdhsa_float_denorm_mode_32 3
.end_amdhsa_kernel"""
```

```python
from fw import *
import math, struct

MF = "v_mfma_f32_16x16x32_bf16"
WS_KV = 0
WS_CTX = 32 << 20
WS_UT = 48 << 20
WS_YT = 52 << 20
WS_G = 56 << 20
X0, X1, X2, WB = 0, 32768, 65536, 98304
LDS_BYTES = 163840
OOB = 0x7ff00000
M0_DROP = 0x30000

sW, sH, sJ = 3, 4, 5
SC, SW_, SX, SQ, SKV, SCTX, SDBG = 8, 12, 16, 20, 24, 28, 32
sC0, sC1, sW0, sW1, sMC, sMW, sCnt, sDC, sDW, sWinc = 36, 37, 38, 39, 40, 41, 42, 43, 44, 45
sX0, sX1, sQ0, sST = 46, 47, 48, 49
sT0, sT1, sT2, sT3 = 50, 51, 52, 53
sN, sSO, sM, sKR, sVR, sEnd2, sEnd1, sCA, sCB, sBadA, sBadB = 54, 55, 56, 57, 58, 59, 60, 61, 62, 64, 66
sScale = 63
sRet = 68
sLo, sHi = 70, 71
sPW, sPM, sS0, sM0, sS1, sM1 = 88, 89, 90, 91, 92, 93
sLast, sKO, sCS = 94, 95, 96
vL16 = 1
vRC0, vRC1, vRX0, vRX1 = 2, 3, 4, 5
vOC, vOW, vRW, vOX = 6, 10, 16, 24
CF0, WF0, QA0 = 32, 96, 128
vK, vV, vTRI, vE, vL16b, vTSO, vTM0, vTKR, vTVR = 2, 3, 4, 8, 16, 17, 18, 19, 20
S0, P0, O0 = 32, 96, 128
aQ, aK, aV, aL, aONE = 0, 64, 96, 128, 144

def f2u(x): return struct.unpack('<I', struct.pack('<f', x))[0]
QSCALE = math.log2(math.e) / math.sqrt(128.0)

class VM:
    def __init__(self): self.ops = []
    def issue(self, tag): self.ops.append(tag)
    def need(self, tags):
        last = max((i for i, t in enumerate(self.ops) if t in tags), default=-1)
        return min(63, len(self.ops) - 1 - last)

def srd(E, d, lo, size):
    E(f"s_mov_b32 s{d}, s{lo}"); E(f"s_mov_b32 s{d+1}, s{lo+1}")
    E(f"s_mov_b32 s{d+2}, {size}"); E(f"s_mov_b32 s{d+3}, 0x20000")

def dma(voff, srd_, soff, k):
    return f"buffer_load_dwordx4 v{voff}, s[{srd_}:{srd_+3}], s{soff} offen offset:{k*1024} lds"

def setup(E, name):
    E(f"s_cmp_ge_u32 s2, 256"); E(f"s_cbranch_scc1 L_end_{name}")
    E("s_load_dwordx2 s[72:73], s[0:1], 0")
    E("s_load_dwordx4 s[76:79], s[0:1], 56")
    E("s_load_dwordx4 s[80:83], s[0:1], 72")
    E("s_load_dwordx4 s[84:87], s[0:1], 112")
    E("v_lshrrev_b32 v1, 6, v0"); E("v_and_b32 v0, 63, v0")
    E(f"v_readfirstlane_b32 s{sW}, v1")
    E(f"s_and_b32 s{sT0}, s2, 7"); E(f"s_lshl_b32 s{sT0}, s{sT0}, 2"); E(f"s_lshr_b32 s{sT1}, s2, 6")
    E(f"s_add_u32 s{sH}, s{sT0}, s{sT1}")
    E(f"s_lshr_b32 s{sJ}, s2, 3"); E(f"s_and_b32 s{sJ}, s{sJ}, 7")
    E(f"v_lshlrev_b32 v{vL16}, 4, v0")
    E("v_lshrrev_b32 v28, 3, v0")
    E("v_lshrrev_b32 v29, 4, v0")
    E("v_and_b32 v30, 7, v0")
    E("v_and_b32 v31, 15, v0")
    for k in range(4):
        E(f"v_add_u32 v14, {4*(k&1)}, v29"); E("v_xor_b32 v14, v14, v30"); E("v_lshlrev_b32 v14, 4, v14")
        E(f"v_add_u32 v15, {8*k}, v28")
        E(f"v_lshlrev_b32 v{vOC+k}, 10, v15"); E(f"v_add_u32 v{vOC+k}, v{vOC+k}, v14")
        E(f"v_subrev_u32 v{vOC+k}, {1024*k}, v{vOC+k}")
        E(f"v_mul_u32_u24 v{vOX+k}, 1152, v15"); E(f"v_add_u32 v{vOX+k}, v{vOX+k}, v14")
        E(f"v_subrev_u32 v{vOX+k}, {1024*k}, v{vOX+k}")
        E(f"v_or_b32 v14, {((k>>1)&1)<<2}, v29"); E("v_lshlrev_b32 v14, 1, v14"); E("v_xor_b32 v14, v14, v31")
        E("v_lshlrev_b32 v14, 4, v14")
        E(f"v_add_u32 v15, {4*k}, v29"); E(f"v_lshlrev_b32 v{vOW+k}, 13, v15")
        E(f"v_add_u32 v{vOW+k}, v{vOW+k}, v14"); E(f"v_subrev_u32 v{vOW+k}, {1024*k}, v{vOW+k}")
    E(f"s_sub_u32 s{sT0}, 15, s{sJ}")
    E(f"s_cmp_lt_u32 s{sW}, 2"); E(f"s_cselect_b32 s{sT1}, s{sJ}, s{sT0}")
    E(f"s_lshl_b32 s{sT1}, s{sT1}, 7"); E(f"s_and_b32 s{sT2}, s{sW}, 1"); E(f"s_lshl_b32 s{sT3}, s{sT2}, 6")
    E(f"s_add_u32 s{sT1}, s{sT1}, s{sT3}"); E(f"s_lshl_b32 s{sC0}, s{sT1}, 10"); E(f"s_add_u32 s{sC1}, s{sC0}, {32*1024}")
    E(f"s_lshl_b32 s{sQ0}, s{sH}, 8")
    E(f"s_lshl_b32 s{sT3}, s{sT2}, 18"); E(f"s_add_u32 s{sW0}, s{sT3}, s{sQ0}"); E(f"s_add_u32 s{sW1}, s{sW0}, {16*8192}")
    E(f"s_lshl_b32 s{sT3}, s{sW}, 5")
    E(f"s_lshl_b32 s{sT1}, s{sJ}, 7"); E(f"s_add_u32 s{sT1}, s{sT1}, s{sT3}"); E(f"s_mul_i32 s{sX0}, s{sT1}, 1152")
    E(f"s_lshl_b32 s{sT1}, s{sT0}, 7"); E(f"s_add_u32 s{sT1}, s{sT1}, s{sT3}"); E(f"s_mul_i32 s{sX1}, s{sT1}, 1152")
    E(f"s_lshl_b32 s{sMC}, s{sW}, 13"); E(f"s_add_u32 s{sMW}, s{sMC}, {WB}")
    E(f"s_cmp_eq_u32 s{sT2}, 0"); E(f"s_cselect_b32 s{sT1}, s{sJ}, s{sT0}"); E(f"s_lshl_b32 s{sT1}, s{sT1}, 16")
    E(f"s_lshr_b32 s{sT3}, s{sW}, 1"); E(f"s_lshl_b32 s{sT3}, s{sT3}, 14"); E(f"s_add_u32 s{sST}, s{sT1}, s{sT3}")
    E(f"s_lshr_b32 s{sT3}, s{sW}, 1"); E(f"s_lshl_b32 s{sT3}, s{sT3}, 19"); E(f"s_lshl_b32 s{sT1}, s{sH}, 14")
    E(f"s_add_u32 s{sT3}, s{sT3}, s{sT1}"); E(f"s_lshl_b32 s{sT1}, s{sT2}, 11"); E(f"s_add_u32 s{sT3}, s{sT3}, s{sT1}")
    E(f"s_lshl_b32 s{sT1}, s{sJ}, 20"); E(f"s_add_u32 s{sCA}, s{sT3}, s{sT1}")
    E(f"s_lshl_b32 s{sT1}, s{sT0}, 20"); E(f"s_add_u32 s{sCB}, s{sT3}, s{sT1}")
    E(f"s_lshl_b32 s{sPW}, s{sW}, 17"); E(f"s_add_u32 s{sPW}, s{sPW}, s{sQ0}"); E(f"s_lshl_b32 s{sPM}, s{sW}, 12")
    E(f"s_lshl_b32 s{sT1}, s{sT0}, 16"); E(f"s_lshl_b32 s{sT3}, s{sW}, 13"); E(f"s_add_u32 s{sT1}, s{sT1}, s{sT3}")
    E(f"s_add_u32 s{sT3}, s{sT1}, 32768")
    E(f"s_lshl_b32 s{sT2}, s{sT2}, 13")
    E(f"s_add_u32 s{sM0}, s{sT2}, {WB+16384}"); E(f"s_add_u32 s{sM1}, s{sT2}, {WB+32768}")
    E(f"s_cmp_lt_u32 s{sW}, 2")
    E(f"s_cselect_b32 s{sS0}, s{sT3}, {OOB}"); E(f"s_cselect_b32 s{sS1}, s{sT1}, s{sT3}")
    E(f"s_cselect_b32 s{sM0}, s{sM0}, {M0_DROP}"); E(f"s_cselect_b32 s{sM1}, s{sM1}, s{sT2}")
    E(f"s_lshl_b32 s{sT1}, s{sJ}, 1"); E(f"s_add_u32 s{sEnd2}, s{sT1}, 4"); E(f"s_sub_u32 s{sEnd1}, 32, s{sT1}")
    E("s_waitcnt lgkmcnt(0)")
    srd(E, SC, 76, 2048 * 1024)
    E(f"s_cmp_lt_u32 s{sW}, 2"); E("s_cselect_b32 s80, s80, s82"); E("s_cselect_b32 s81, s81, s83")
    srd(E, SW_, 80, 512 * 8192)
    srd(E, SX, 72, 2048 * 1152)
    srd(E, SQ, 78, 576 * 8192)
    E(f"s_lshl_b32 s{sT1}, s{sH}, 20"); E(f"s_add_u32 s74, s86, s{sT1}"); E("s_addc_u32 s75, s87, 0")
    srd(E, SKV, 74, 1 << 20)
    E(f"s_add_u32 s74, s86, {WS_CTX}"); E("s_addc_u32 s75, s87, 0")
    srd(E, SCTX, 74, 16 << 20)
    srd(E, SDBG, 84, 256)

def p1_prologue(E):
    def grp(m0s, m0add, voff, srd_, soff):
        E(f"s_add_u32 m0, s{m0s}, {m0add}"); E("s_nop 0")
        for k in range(4): E(dma(voff + k, srd_, soff, k))
    grp(sMC, 0, vOC, SC, sC0); grp(sMW, 0, vOW, SW_, sW0); grp(sMC, 4096, vOC, SC, sC1); grp(sMW, 4096, vOW, SW_, sW1)
    E(f"s_add_u32 s{sC0}, s{sC0}, 128"); E(f"s_add_u32 s{sC1}, s{sC1}, 128")
    E(f"s_add_u32 s{sW0}, s{sW0}, {64*8192}"); E(f"s_add_u32 s{sW1}, s{sW1}, {64*8192}")
    grp(sMC, 32768, vOC, SC, sC0); grp(sMC, 32768 + 4096, vOC, SC, sC1); grp(sMW, 32768, vOW, SW_, sW0)
    E(f"s_add_u32 s{sC0}, s{sC0}, 128"); E(f"s_add_u32 s{sC1}, s{sC1}, 128"); E(f"s_add_u32 s{sW0}, s{sW0}, {64*8192}")
    E(f"s_add_u32 s{sT0}, s{sX0}, 256"); E(f"s_add_u32 s{sT1}, s{sX1}, 256")
    grp(sMC, X2, vOX, SX, sT0); grp(sMC, X2 + 4096, vOX, SX, sT1)
    E(f"s_add_u32 s{sMW}, s{sMW}, 32768")
    E(f"s_mov_b32 s{sWinc}, {64*8192}")
    E("v_lshrrev_b32 v14, 1, v31"); E("v_xor_b32 v14, v14, v29"); E("v_lshlrev_b32 v14, 4, v14")
    E("v_lshlrev_b32 v15, 7, v31"); E("v_add_u32 v14, v14, v15")
    E(f"s_and_b32 s{sT2}, s{sW}, 1"); E(f"s_lshl_b32 s{sT2}, s{sT2}, 14")
    E(f"v_add_u32 v{vRC0}, s{sT2}, v14"); E(f"v_xor_b32 v{vRC1}, 64, v{vRC0}")
    E(f"s_lshl_b32 s{sT3}, s{sW}, 13"); E(f"s_add_u32 s{sT3}, s{sT3}, {X2}")
    E(f"v_add_u32 v{vRX0}, s{sT3}, v14"); E(f"v_xor_b32 v{vRX1}, 64, v{vRX0}")
    E("v_lshrrev_b32 v14, 2, v31")
    E("v_lshlrev_b32 v15, 3, v29"); E("v_add_u32 v15, v15, v14"); E("v_lshlrev_b32 v15, 8, v15")
    E("v_and_b32 v28, 1, v29"); E("v_lshlrev_b32 v28, 2, v28"); E("v_or_b32 v14, v14, v28"); E("v_lshlrev_b32 v14, 5, v14")
    E("v_add_u32 v15, v15, v14"); E("v_and_b32 v14, 3, v0"); E("v_lshlrev_b32 v14, 3, v14"); E("v_add_u32 v15, v15, v14")
    E(f"s_lshr_b32 s{sT3}, s{sW}, 1"); E(f"s_lshl_b32 s{sT3}, s{sT3}, 14"); E(f"s_add_u32 s{sT3}, s{sT3}, {WB}")
    E(f"v_add_u32 v15, s{sT3}, v15")
    for dt in range(8): E(f"v_xor_b32 v{vRW+dt}, {dt*32}, v15")
    for r in range(256): E(f"v_accvgpr_write_b32 a{r}, 0")
    E(f"s_mov_b32 s{sCnt}, 0"); E(f"s_mov_b32 s{sDC}, 32768"); E(f"s_mov_b32 s{sDW}, 32768")
    E("s_waitcnt vmcnt(20)"); E("s_barrier")
    for t in wreads(0, 0) + wreads(1, 1): E(t)
    for kt in range(8):
        for ks in range(2): E(cread(kt, ks))

def wreads(dt, buf, off=0):
    L = []
    for ks in range(2):
        for hf in range(2):
            r = WF0 + buf * 8 + ks * 4 + hf * 2
            L.append(f"ds_read_b64_tr_b16 {V(r,2)}, v{vRW+dt} offset:{off + ks*8192 + hf*1024}")
    return L
def cread(kt, ks, base=CF0, a0=vRC0, off=0):
    return f"ds_read_b128 {V(base+(kt*2+ks)*4,4)}, v{a0+ks} offset:{off + kt*2048}"
def rset(text): return set(I(text).w)

def p1_body(role, name):
    mf = []
    for r in range(8):
        for kt in range(8):
            acc = 8 * (kt * 4 + r // 2) + 4 * (r & 1) if role == 'K' else 8 * ((kt // 2) * 8 + r) + 4 * (kt & 1)
            for ks in range(2):
                w = V(WF0 + (r % 4) * 8 + ks * 4, 4); c = V(CF0 + (kt * 2 + ks) * 4, 4)
                a, b = (w, c) if role == 'K' else (c, w)
                mf.append(f"{MF} {A(acc,4)}, {a}, {b}, {A(acc,4)}")
    B = Body(mf)
    B.put(0, f"s_add_u32 m0, s{sMW}, 4096")
    for k in range(4): B.mem(1 + 4 * k, dma(vOW + k, SW_, sW1, k))
    B.put(13, f"s_add_u32 s{sW1}, s{sW1}, s{sWinc}")
    B.put(14, f"s_xor_b32 s{sMW}, s{sMW}, {WB ^ (WB+32768)}")
    g = 0
    for t in wreads(2, 2) + wreads(3, 3): g = B.mem(g, t) + 1
    for row in range(1, 5):
        g = row * 16
        for t in wreads(row + 3, (row + 3) % 4): g = B.mem(g, t) + 1
    B.put(40, f"s_cmp_ge_u32 s{sCnt}, 6"); B.put(41, f"s_cbranch_scc1 L_p1sw_{name}"); B.put(41, f"L_p1bk_{name}:")
    B.put(78, "s_waitcnt vmcnt(0) lgkmcnt(0)"); B.put(79, "s_barrier")
    B.put(80, f"s_mov_b32 m0, s{sMC}")
    for k in range(4): B.mem(81 + 4 * k, dma(vOC + k, SC, sC0, k))
    B.put(94, f"s_add_u32 m0, s{sMC}, 4096"); B.put(95, f"s_add_u32 s{sC0}, s{sC0}, 128")
    for k in range(4): B.mem(97 + 4 * k, dma(vOC + k, SC, sC1, k))
    B.put(110, f"s_mov_b32 m0, s{sMW}"); B.put(111, f"s_add_u32 s{sC1}, s{sC1}, 128"); B.put(111, f"s_xor_b32 s{sMC}, s{sMC}, 32768")
    g = 82
    for dt in range(8): g = B.fit(g, f"v_add_u32 v{vRW+dt}, s{sDW}, v{vRW+dt}")
    for k in range(2): g = B.fit(g, f"v_add_u32 v{vRC0+k}, s{sDC}, v{vRC0+k}")
    g = B.fit(g, f"s_sub_u32 s{sDW}, 0, s{sDW}"); g = B.fit(g, f"s_sub_u32 s{sDC}, 0, s{sDC}")
    g = 96
    for t in wreads(0, 0) + wreads(1, 1): g = B.mem(g, t) + 1
    for kt in range(8):
        for ks in range(2): B.first[112 + kt * 2 + ks] = cread(kt, ks)
    for k in range(4): B.put(113 + 4 * k, dma(vOW + k, SW_, sW0, k))
    B.put(126, f"s_add_u32 s{sW0}, s{sW0}, s{sWinc}")
    B.put(122, f"s_add_u32 s{sCnt}, s{sCnt}, 1")
    return B

def p1_exit_state():
    return [rset(t) for t in wreads(0, 0) + wreads(1, 1)] + [rset(cread(kt, ks)) for kt in range(8) for ks in range(2)]

def p1_stub(E, name):
    E(f"L_p1sw_{name}:")
    E(f"s_cmp_eq_u32 s{sCnt}, 7"); E(f"s_cbranch_scc1 L_p1sw7_{name}")
    for k in range(3): E(f"s_mov_b32 s{SC+k}, s{SX+k}"); E(f"s_mov_b32 s{SW_+k}, s{SQ+k}")
    for k in range(4): E(f"v_mov_b32 v{vOC+k}, v{vOX+k}")
    E(f"s_mov_b32 s{sC0}, s{sX0}"); E(f"s_mov_b32 s{sC1}, s{sX1}")
    E(f"s_lshl_b32 s{sW0}, s{sW}, 18"); E(f"s_add_u32 s{sW0}, s{sW0}, s{sQ0}"); E(f"s_add_u32 s{sW1}, s{sW0}, {16*8192}")
    E(f"s_mov_b32 s{sWinc}, {128*8192}")
    E(f"s_branch L_p1bk_{name}")
    E(f"L_p1sw7_{name}:")
    E(f"s_lshl_b32 s{sT0}, s{sW}, 13"); E(f"s_and_b32 s{sT1}, s{sW}, 1"); E(f"s_lshl_b32 s{sT1}, s{sT1}, 14")
    E(f"s_sub_u32 s{sT0}, s{sT0}, s{sT1}"); E(f"s_add_u32 s{sDC}, s{sDC}, s{sT0}")
    E(f"s_lshr_b32 s{sT1}, s{sW}, 1"); E(f"s_lshl_b32 s{sT1}, s{sT1}, 14"); E(f"s_sub_u32 s{sDW}, s{sDW}, s{sT1}")
    E(f"s_branch L_p1bk_{name}")

def qacc(r, qt): return QA0 + (qt * 4 + r // 2) * 8 + (r & 1) * 4
NK, NV = 4, 4
def p2(E, name, probs):
    vm = VM()
    for t in ['x1'] * 8 + ['w2'] * 4: vm.issue(t)
    mf = []
    for s in range(9):
        for r in range(8):
            for qt in range(4):
                for ks in range(2):
                    acc = V(qacc(r, qt), 4)
                    c = "0" if (s == 0 and ks == 0) else acc
                    mf.append(f"{MF} {acc}, {V(WF0+(r%4)*8+ks*4,4)}, {V(CF0+(s&1)*32+(qt*2+ks)*4,4)}, {c}")
    B = Body(mf)
    order = list(range(16, 32)) + list(range(0, 16))
    nst = [4, 4, 4, 4, 4, 4, 8, 0, 0]
    PK = [6, 28]
    TM = [14, 15]
    sti = 0
    events = []
    conv_items = []
    for s in range(9):
        g0 = s * 64
        bar = g0 + 15
        slots = [g0 + 1 + 4 * k for k in range(16)]
        ops = []
        if s == 0:
            for k in range(4):
                ops.append(([f"s_add_u32 m0, s{sMW}, 4096"] if k == 0 else [], dma(vOW + k, SQ, sW1, k), 'w2', [], 0))
        st = []
        for q in range(nst[s]):
            f = order[sti]; pk = PK[sti & 1]
            off = (f >> 4) * 32768 + (f & 15) * 1024
            pre = [f"s_add_u32 s{sT2}, s{sST}, {off & ~4095}"] if (f & 3) == 0 else []
            st.append((pre, f"buffer_store_dwordx4 {V(pk,4)}, v{vL16}, s[{SKV}:{SKV+3}], s{sT2} offen offset:{off & 4095} sc1", f'st{sti}', [], ('conv', f, pk)))
            sti += 1
        xl = []
        if s <= 5:
            slot = [X0, X1, X2][s % 3]
            for gi, so in enumerate((sX0, sX1)):
                for k in range(4):
                    pre = [f"s_add_u32 s{sT0}, s{so}, {(s+3)*128}", f"s_add_u32 m0, s{sT3}, {slot + gi*4096}"] if k == 0 else []
                    xl.append((pre, dma(vOX + k, SX, sT0, k), f'x{s+3}', [], g0 + 8))
        wl = []
        if 1 <= s <= 5:
            for k in range(4):
                pre = [f"s_add_u32 s{sT1}, s{sPW}, {(s+3)*64*8192}", f"s_add_u32 m0, s{sPM}, {WB + ((s+3)%4)*16384}"] if k == 0 else []
                wl.append((pre, dma(vOW + k, SQ, sT1, k), f'w{s+3}', [], bar + 1))
        tl = []
        if s in (6, 8):
            n = 0 if s == 6 else 1
            for k in range(8):
                pre = []
                so, mm = (sS0, sM0) if n == 0 else (sS1, sM1)
                if k == 0: pre = [f"s_mov_b32 m0, s{mm}"]
                if k == 4: pre = ["s_add_u32 m0, m0, 4096", f"s_add_u32 s{so}, s{so}, 4096"]
                tl.append((pre, dma(vL16, SKV, so, k & 3), f't{n}', [], bar + 1))
        if s == 0: seq = ops + xl[:4] + st[:2] + xl[4:] + st[2:]
        elif s <= 5: seq = st[:2] + xl[:4] + st[2:3] + wl + st[3:] + xl[4:]
        elif s == 6: seq = st[:4] + tl[:4] + st[4:6] + tl[4:] + st[6:]
        elif s == 7: seq = []
        else: seq = [None] * 4 + [([], f"buffer_atomic_add v28, v29, s[{SDBG}:{SDBG+3}], 0 offen sc1", 'pub', [], bar + 1)] + tl
        for k, o in enumerate(seq):
            if o is None: continue
            events.append((slots[k], o))
        events.append((bar, s))
    events.sort(key=lambda e: e[0])
    prev_store_gap = [-1, -1]
    for g, o in events:
        if isinstance(o, int):
            s = o
            tags = {f'w{s+1}', f'x{s+1}'}
            if s == 1: tags |= {'w2'}
            if s == 6: tags |= {f'st{i}' for i in range(16)}
            if s == 8: tags |= {f'st{i}' for i in range(32)}
            B.put(g - 1, f"s_waitcnt vmcnt({vm.need(tags)})"); B.put(g, "s_barrier")
            continue
        pre, text, tag, post, mg = o
        if isinstance(mg, int): assert g >= mg, (g, mg, text)
        for q, t in enumerate(pre): B.put(g - 1 - (len(pre) - 1 - q) // 2 if len(pre) > 1 else g - 1, t)
        B.first[g] = text; vm.issue(tag)
        if isinstance(mg, tuple): conv_items.append((g, mg[1], mg[2]))
    for s in range(9):
        for r in range(8):
            rr = r + 2; ss = s + rr // 8
            if ss > 8: continue
            g = s * 64 + r * 8
            for t in wreads(rr % 8, rr % 4, (ss % 4) * 16384): g = B.mem(g, t, hi=s * 64 + r * 8 + 7) + 1
        if s < 8:
            sl = (s + 1) % 3
            g = s * 64 + 18
            for qt in range(4):
                for ks in range(2):
                    t = cread(qt, ks, CF0 + ((s + 1) & 1) * 32, vRX0 if sl == 2 else vRC0, 32768 if sl == 1 else 0)
                    g = B.mem(g, t) + 4
    out_state = B.add_waits(p1_exit_state())
    lastg = {6: 1, 28: 1}; lo = 1
    for g, f, pk in conv_items:
        it = []
        for q in range(4):
            it += [f"v_accvgpr_read_b32 v14, a{8*f+2*q}", f"v_accvgpr_read_b32 v15, a{8*f+2*q+1}", f"v_cvt_pk_bf16_f32 v{pk+q}, v14, v15"]
        k = max(lo, lastg[pk] + 1)
        for t in it: k = B.fit(k, t, hi=g - 1)
        lo = k; lastg[pk] = g
    g = 7 * 64 + 8
    for t in ["v_mov_b32 v28, 1", "v_lshlrev_b32 v29, 12, v0", f"s_xor_b32 s{sT0}, s{sW}, 1", f"s_lshl_b32 s{sT0}, s{sT0}, 12",
              f"s_lshl_b32 s{sT1}, s{sH}, 2", f"s_add_u32 s{sT0}, s{sT0}, s{sT1}", f"v_add_u32 v29, s{sT0}, v29"]:
        g = B.fit(g, t)
    def qepi(ds, pk):
        it = []
        for qt in range(4):
            b = QA0 + (qt * 4 + ds) * 8
            if pk:
                for q in range(4): it.append(f"v_pk_mul_f32 {V(b+2*q,2)}, {V(b+2*q,2)}, s[{sLo}:{sHi}]")
                for q in range(4): it.append(f"v_cvt_pk_bf16_f32 v{b+q}, v{b+2*q}, v{b+2*q+1}")
            else:
                for q in range(4):
                    it += [f"v_mul_f32 v{b+2*q}, s{sLo}, v{b+2*q}", f"v_mul_f32 v{b+2*q+1}, s{sLo}, v{b+2*q+1}", f"v_cvt_pk_bf16_f32 v{b+q}, v{b+2*q}, v{b+2*q+1}"]
            for q in range(4): it.append(f"v_accvgpr_write_b32 a{aQ+(qt*4+ds)*4+q}, v{b+q}")
        return it
    g = 8 * 64 + 16 + 6
    for t in qepi(0, False): g = B.fit(g, t)
    L = B.lines()
    pre = [f"s_lshl_b32 s{sT3}, s{sW}, 13", f"s_mov_b32 s{sLo}, {f2u(QSCALE)}", f"s_mov_b32 s{sHi}, {f2u(QSCALE)}"]
    return B, pre, L, [qepi(1, True), qepi(2, True), qepi(3, True)], vm


def Sreg(buf, qt, kt): return S0 + buf * 32 + qt * 8 + kt * 4
def Preg(buf, qt): return P0 + buf * 16 + qt * 4
def Oreg(qt, dt): return O0 + qt * 32 + dt * 4
def kread(i, p): return f"ds_read_b128 {A(aK+4*i,4)}, v{vK} offset:{(1-p)*8192 + i*1024}"
def vread(i, p): return f"ds_read_b128 {A(aV+4*i,4)}, v{vV} offset:{p*8192 + i*1024}"
KSTATE = [rset(kread(i, 0)) for i in range(8)]

def sm_items(gi, mode, p, e0):
    it = []; pend = []
    e = e0
    for ql in range(2):
        qt = gi * 2 + ql
        for kt in range(2):
            if mode == 'diag' and kt > ql:
                it += [f"v_mov_b32 v{Preg(p,qt)+2}, 0", f"v_mov_b32 v{Preg(p,qt)+3}, 0"]
                continue
            for h in range(2):
                a, b = vE + e % 8, vE + (e + 1) % 8; e += 2
                it.append(f"v_exp_f32 v{a}, v{Sreg(p,qt,kt)+2*h}")
                if pend: it.append(pend.pop())
                it.append(f"v_exp_f32 v{b}, v{Sreg(p,qt,kt)+2*h+1}")
                pend.append(f"v_cvt_pk_bf16_f32 v{Preg(p,qt)+kt*2+h}, v{a}, v{b}")
    return it, pend, e

def sync_even():
    return dict(m0=f"s_mov_b32 m0, s{sM}", vo=vL16)
def p3_body(p, cfg, dma_on=True, kr=True, extra=(), tail=()):
    qk = []; pv = []
    for kt in range(2):
        for gi in (1, 0):
            m = cfg[gi][0]
            if not m: continue
            for ql in range(2):
                if m == 'diag' and kt > ql: continue
                qt = gi * 2 + ql; d = V(Sreg(1 - p, qt, kt), 4)
                for ds in range(4):
                    c = d if ds else (V(vTRI, 4) if (m == 'diag' and kt == ql) else "0")
                    qk.append(f"{MF} {d}, {A(aK+(kt*4+ds)*4,4)}, {A(aQ+(qt*4+ds)*4,4)}, {c}")
    qts = [gi * 2 + ql for gi in (1, 0) if cfg[gi][2] for ql in range(2)]
    first = lambda qt: cfg[qt // 2][2] == 'first'
    for qt in qts:
        pv.append(f"{MF} {A(aL+4*qt,4)}, {A(aONE,4)}, {V(Preg(1-p,qt),4)}, {'0' if first(qt) else A(aL+4*qt,4)}")
    for dt in range(8):
        for qt in qts:
            o = V(Oreg(qt, dt), 4)
            pv.append(f"{MF} {o}, {A(aV+4*dt,4)}, {V(Preg(1-p,qt),4)}, {'0' if first(qt) else o}")
    B = Body(qk + pv); n = B.n; nq = len(qk)
    for t in tail: B.put(n - 1, t)
    sync = dma_on and p == 1
    if sync:
        B.put(n - 2, "s_waitcnt vmcnt(8)"); B.put(n - 1, "s_barrier")
    if pv:
        if nq == 0:
            for i in range(4): B.pre.append(vread(i, p))
            for i in range(4, 8): B.mem(i - 4, vread(i, p))
        else:
            span = nq + len(qts) + 2 * len(qts) - 3
            for i in range(8): B.mem(min(i * span // 8, n - 1), vread(i, p))
    klo = n
    if kr:
        last = {}
        for k, t in enumerate(qk):
            for i in range(8):
                if A(aK + 4 * i, 4) + "," in t: last[i] = k
        lo = nq if pv else 0
        hi = n - 3 if pv else n - 1
        for i in range(8):
            g = max(lo + i * (hi - lo) // 8, last.get(i, 0))
            g = B.mem(g, kread(i, p)); klo = min(klo, g)
    if dma_on:
        step = max(2, (n - 4) // 4)
        gl = []
        for k in range(4):
            gl.append(B.mem(min(2 + k * step, n - 2), dma(vL16 if p == 0 else vL16b, SKV, sSO, k), hi=min(2 + k * step + 2, n - 2)))
        B.rest[0].insert(0, f"s_mov_b32 m0, s{sM}" if p == 0 else "s_add_u32 m0, m0, 4096")
        if p == 1:
            g = B.fit(1, f"s_add_u32 s{sN}, s{sN}, 1", hi=gl[3])
            g = B.fit(g + 1, f"v_readlane_b32 s{sM}, v{vTM0}, s{sN}", hi=n - 2)
            B.fit(max(gl[3], g), f"v_readlane_b32 s{sSO}, v{vTSO}, s{sN}", hi=n - 2)
    if p == 0:
        if kr:
            g = B.fit(0, f"v_readlane_b32 s{sKR}, v{vTKR}, s{sN}", hi=max(0, klo - 3))
            B.fit(g + 2 if g + 2 <= klo - 1 else klo - 1, f"v_add_u32 v{vK}, s{sKR}, v{vL16}", hi=klo - 1)
        if dma_on:
            vlast = max([g for g in range(n) if any((t or '').startswith('ds_read') and f", v{vV} " in t for t in [B.first[g]] + B.rest[g])], default=0)
            g = B.fit(1, f"v_readlane_b32 s{sVR}, v{vTVR}, s{sN}", hi=n - 4)
            B.fit(max(g + 2, vlast), f"v_add_u32 v{vV}, s{sVR}, v{vL16}", hi=n - 2)
    B.add_waits(KSTATE + ([rset(t) for t in B.pre if t.startswith('ds_')]), minlat=5)
    it = []; e = 0; pend = []
    for gi in (1, 0):
        if cfg[gi][1]:
            a, pd, e = sm_items(gi, cfg[gi][1], p, e)
            if pend: a.insert(1, pend.pop())
            it += a; pend = pd
    if pend: it += ["s_nop 0"] + pend if not extra else [extra[0]] + pend
    it += list(extra[1:] if pend else extra)
    place_valu(B, it, 0, n - 2)
    return B

def place_valu(B, items, lo, hi):
    if not items: return
    tot = sum(I(t).cost() for t in items)
    for capx in range(0, 40):
        room = [max(0, B.room(g)) for g in range(lo, hi + 1)]
        ng = hi - lo + 1
        cand = sorted(range(ng), key=lambda g: (abs(room[g] - 1), (g * 7919) % ng))
        x = capx * max(1, (tot // 40))
        for q in range(x): room[cand[q % ng]] += 1
        F = sum(room)
        if F < tot: continue
        ratio = tot / F
        k = 0; placed = 0; budget = 0.0; plan = []
        for g in range(ng):
            budget += room[g] * ratio; r = room[g]
            while k < len(items):
                c = I(items[k]).cost()
                if r < c or placed + c * 0.5 > budget + 1.5: break
                plan.append((g + lo, items[k])); r -= c; placed += c; k += 1
        if k == len(items):
            for g, t in plan:
                rest = B.rest[g]; pos = len(rest)
                while pos > 0 and rest[pos - 1].startswith(('s_waitcnt', 's_barrier', 's_cbranch', 's_cmp')): pos -= 1
                rest.insert(pos, t)
            return
    raise RuntimeError("cannot place")

def epilogue(E, gi, sC, sBad):
    E("s_nop 7")
    for ql in range(2): E(f"v_accvgpr_read_b32 v{vE+ql}, a{aL+4*(gi*2+ql)}")
    E(f"v_rcp_f32 v{vE+2}, v{vE}"); E(f"v_rcp_f32 v{vE+4}, v{vE+1}")
    if sBad is not None:
        E(f"v_max_f32 v{vE+6}, v{vE}, v{vE+1}"); E(f"v_min_f32 v{vE+7}, v{vE}, v{vE+1}")
        E(f"v_cmp_u_f32 s[{sT0}:{sT1}], v{vE}, v{vE+1}")
        E(f"v_cmp_lt_f32 vcc, 0x{f2u(2.0**60):x}, v{vE+6}"); E(f"s_or_b64 s[{sBad}:{sBad+1}], s[{sT0}:{sT1}], vcc")
        E(f"v_cmp_gt_f32 vcc, 0x{f2u(2.0**-60):x}, v{vE+7}"); E(f"s_or_b64 s[{sBad}:{sBad+1}], s[{sBad}:{sBad+1}], vcc")
    E(f"v_mov_b32 v{vE+3}, v{vE+2}"); E(f"v_mov_b32 v{vE+5}, v{vE+4}")
    for ds in range(4):
        E(f"s_add_u32 s{sT2}, s{sC}, {ds*4096}")
        for ql in range(2):
            b = Oreg(gi * 2 + ql, 2 * ds)
            for q in range(4): E(f"v_pk_mul_f32 {V(b+2*q,2)}, {V(b+2*q,2)}, {V(vE+2+2*ql,2)}")
            for q in range(4): E(f"v_cvt_pk_bf16_f32 v{b+q}, v{b+2*q}, v{b+2*q+1}")
            E(f"buffer_store_dwordx4 {V(b,4)}, v{vL16}, s[{SCTX}:{SCTX+3}], s{sT2} offen offset:{ql*1024}")

def slow_path(E, name):
    vM, vMN, vAL = 20, 22, 24
    E(f"L_slow_{name}:")
    E("s_waitcnt vmcnt(0)")
    for r in range(64): E(f"v_mov_b32 v{O0+r}, 0")
    for r in range(8): E(f"v_accvgpr_write_b32 a{aL+r}, 0")
    for r in range(8): E(f"v_mov_b32 v{P0+16+r}, 0")
    E(f"v_mov_b32 v{vM}, 0xff7fffff"); E(f"v_mov_b32 v{vM+1}, 0xff7fffff")
    E(f"s_mov_b32 s{sN}, 0")
    E(f"L_slowloop_{name}:")
    E(f"s_lshr_b32 s{sKO}, s{sN}, 1"); E(f"s_lshl_b32 s{sKO}, s{sKO}, 15"); E(f"s_and_b32 s{sT0}, s{sN}, 1"); E(f"s_lshl_b32 s{sT0}, s{sT0}, 13")
    E(f"s_add_u32 s{sKO}, s{sKO}, s{sT0}"); E(f"s_add_u32 s{sT1}, s{sKO}, 16384")
    for i in range(8): E(f"buffer_load_dwordx4 {A(aK+4*i,4)}, v{vL16 if i<4 else vL16b}, s[{SKV}:{SKV+3}], s{sKO} offen offset:{(i&3)*1024}")
    for i in range(8): E(f"buffer_load_dwordx4 {A(aV+4*i,4)}, v{vL16 if i<4 else vL16b}, s[{SKV}:{SKV+3}], s{sT1} offen offset:{(i&3)*1024}")
    E(f"s_cmp_lg_u32 s{sN}, s{sLast}"); E(f"s_cbranch_scc1 L_slownd_{name}")
    for r in range(4): E(f"v_mov_b32 v{P0+16+r}, v{vTRI+r}"); E(f"v_mov_b32 v{P0+20+r}, 0xff800000")
    E(f"L_slownd_{name}:")
    E("s_waitcnt vmcnt(0)"); E("s_nop 1")
    for qt in range(2):
        for kt in range(2):
            d = V(Sreg(0, qt, kt), 4)
            for ds in range(4):
                c = d if ds else ("0" if kt < qt else V(P0 + 16, 4) if kt == qt else V(P0 + 20, 4))
                E(f"{MF} {d}, {A(aK+(kt*4+ds)*4,4)}, {A(aQ+(qt*4+ds)*4,4)}, {c}")
    E("s_nop 7")
    for qt in range(2):
        s = Sreg(0, qt, 0); m = vMN + qt
        E(f"v_max3_f32 v{m}, v{s}, v{s+1}, v{vM+qt}"); E(f"v_max3_f32 v{m}, v{s+2}, v{s+3}, v{m}")
        E(f"v_max3_f32 v{m}, v{s+4}, v{s+5}, v{m}"); E(f"v_max3_f32 v{m}, v{s+6}, v{s+7}, v{m}")
        for sw in ("v_permlane16_swap_b32", "v_permlane32_swap_b32"):
            E(f"v_mov_b32 v{vE}, v{m}"); E("s_nop 1"); E(f"{sw} v{vE}, v{m}"); E(f"v_max_f32 v{m}, v{m}, v{vE}")
        E(f"v_sub_f32 v{vAL+qt}, v{vM+qt}, v{m}"); E(f"v_exp_f32 v{vAL+qt}, v{vAL+qt}"); E(f"v_mov_b32 v{vM+qt}, v{m}")
        for r in range(8): E(f"v_sub_f32 v{s+r}, v{s+r}, v{m}"); E(f"v_exp_f32 v{s+r}, v{s+r}")
        E("s_nop 0")
        for q in range(4): E(f"v_cvt_pk_bf16_f32 v{Preg(0,qt)+q}, v{s+2*q}, v{s+2*q+1}")
        for r in range(32): E(f"v_mul_f32 v{Oreg(qt,0)+r}, v{vAL+qt}, v{Oreg(qt,0)+r}")
        for r in range(4):
            E(f"v_accvgpr_read_b32 v{vE}, a{aL+4*qt+r}"); E(f"v_mul_f32 v{vE}, v{vAL+qt}, v{vE}"); E(f"v_accvgpr_write_b32 a{aL+4*qt+r}, v{vE}")
    E("s_nop 1")
    for qt in range(2): E(f"{MF} {A(aL+4*qt,4)}, {A(aONE,4)}, {V(Preg(0,qt),4)}, {A(aL+4*qt,4)}")
    for dt in range(8):
        for qt in range(2):
            o = V(Oreg(qt, dt), 4); E(f"{MF} {o}, {A(aV+4*dt,4)}, {V(Preg(0,qt),4)}, {o}")
    E("s_nop 7")
    E(f"s_add_u32 s{sN}, s{sN}, 1"); E(f"s_cmp_le_u32 s{sN}, s{sLast}"); E(f"s_cbranch_scc1 L_slowloop_{name}")
    epilogue(E, 0, sCS, None)

def gen_k12(name, force_slow=False, verbose=True):
    L = []; E = L.append
    probs = []
    E(".p2align 8"); E(f".type {name},@function"); E(f"{name}:")
    n0 = len(L)
    setup(E, name); p1_prologue(E)
    pro = L[n0:]
    BK, BV = p1_body('K', name + "K"), p1_body('V', name + "V")
    for Bd in (BK, BV):
        Bd.add_waits(p1_exit_state())
    E(f"s_cmp_ge_u32 s{sW}, 2"); E(f"s_cbranch_scc1 L_p1_{name}V")
    for role, Bd in (('K', BK), ('V', BV)):
        Bd.put(126, f"s_cmp_lt_u32 s{sCnt}, 8"); Bd.put(127, f"s_cbranch_scc1 L_p1_{name}{role}")
        E(".p2align 6"); E(f"L_p1_{name}{role}:")
        L += Bd.lines()
        if role == 'K': E(f"s_branch L_p2_{name}")
    B2, pre2, L2, qrest, vm = p2(E, name, probs)
    E(f"L_p2_{name}:")
    n2 = len(L)
    L += pre2 + L2
    for q in qrest[:2]: L += q
    E(f"v_add_u32 v{vL16b}, 4096, v{vL16}")
    E(f"s_lshr_b32 s{sT0}, s{sW}, 1"); E(f"s_sub_u32 s{sT1}, 2, s{sT0}")
    E(f"v_add_u32 v21, s{sT1}, v0")
    E(f"s_lshl_b32 s{sT1}, s{sJ}, 1")
    E(f"s_sub_u32 s{sT2}, 31, s{sT1}"); E(f"s_add_u32 s{sT3}, s{sT1}, 3")
    E(f"v_mov_b32 v22, s{sT3}"); E(f"v_mov_b32 v23, s{sT2}")
    E("v_cmp_gt_u32 vcc, 2, v21"); E("s_nop 1"); E("v_cndmask_b32 v22, v22, v23, vcc")
    E(f"v_cmp_lt_u32 vcc, s{sT3}, v21"); E("v_mov_b32 v23, 33"); E("s_nop 0"); E("v_cndmask_b32 v22, v22, v23, vcc")
    E("v_sub_u32 v22, v22, v21"); E("v_lshlrev_b32 v22, 15, v22")
    E(f"s_lshl_b32 s{sT3}, s{sW}, 13"); E(f"v_add_u32 v22, s{sT3}, v22")
    E(f"v_cmp_lt_u32 vcc, s{sT2}, v21"); E(f"v_mov_b32 v23, {OOB}"); E("s_nop 0"); E(f"v_cndmask_b32 v{vTSO}, v22, v23, vcc")
    E(f"s_cmp_lt_u32 s{sW}, 2"); E(f"s_cselect_b32 s{sT1}, 3, 1"); E(f"s_cselect_b32 s{sT2}, {WB}, {X0}")
    E(f"s_and_b32 s{sT3}, s{sW}, 1"); E(f"s_lshl_b32 s{sT3}, s{sT3}, 13"); E(f"s_add_u32 s{sT2}, s{sT2}, s{sT3}")
    E(f"v_add_u32 v22, s{sT1}, v0"); E("v_and_b32 v22, 3, v22"); E("v_lshlrev_b32 v22, 14, v22"); E(f"v_add_u32 v{vTM0}, s{sT2}, v22")
    E("v_add_u32 v22, 1, v0"); E("v_and_b32 v22, 3, v22"); E("v_lshlrev_b32 v22, 14, v22"); E(f"v_add_u32 v{vTKR}, {WB}, v22")
    E("v_add_u32 v22, 3, v0"); E("v_and_b32 v22, 3, v22"); E(f"v_lshlrev_b32 v{vTVR}, 14, v22")
    E("v_lshrrev_b32 v22, 4, v0"); E("v_lshlrev_b32 v22, 2, v22"); E("v_and_b32 v23, 15, v0"); E("v_sub_u32 v22, v23, v22")
    E("v_mov_b32 v23, 0xff800000")
    for r in range(4):
        E(f"v_cmp_gt_i32 vcc, {r}, v22"); E(f"v_mov_b32 v21, 0x3f803f80"); E(f"v_accvgpr_write_b32 a{aONE+r}, v21"); E(f"v_cndmask_b32 v{vTRI+r}, 0, v23, vcc")
    for r in range(8): E(f"v_accvgpr_write_b32 a{aL+r}, 0")
    L += qrest[2]
    E(f"s_mov_b32 s{sN}, 0"); E(f"s_mov_b64 s[{sBadA}:{sBadA+1}], 0"); E(f"s_mov_b64 s[{sBadB}:{sBadB+1}], 0")
    E(f"v_readlane_b32 s{sSO}, v{vTSO}, 0"); E(f"v_readlane_b32 s{sM}, v{vTM0}, 0")
    E(f"v_mov_b32 v{vV}, v{vL16}")
    E(f"s_waitcnt vmcnt({vm.need({'t0'})})"); E("s_barrier")
    def idle(p, gate=False):
        if p == 0:
            E(f"v_readlane_b32 s{sKR}, v{vTKR}, s{sN}"); E(f"v_readlane_b32 s{sVR}, v{vTVR}, s{sN}"); E(f"s_mov_b32 m0, s{sM}")
            E(f"v_add_u32 v{vK}, s{sKR}, v{vL16}"); E(f"v_add_u32 v{vV}, s{sVR}, v{vL16}")
        else:
            E("s_add_u32 m0, m0, 4096")
        E("s_waitcnt lgkmcnt(0)")
        for i in range(8): E(kread(i, p))
        for k in range(4): E(dma(vL16 if p == 0 else vL16b, SKV, sSO, k))
        if p == 1:
            E(f"s_add_u32 s{sN}, s{sN}, 1"); E(f"v_readlane_b32 s{sM}, v{vTM0}, s{sN}"); E(f"v_readlane_b32 s{sSO}, v{vTSO}, s{sN}")
            if gate:
                E(f"s_lshl_b32 s{sT0}, s{sH}, 2"); E(f"v_mov_b32 v21, s{sT0}"); E(f"s_mov_b32 s{sT1}, 0")
                E(f"L_poll_{name}:")
                E(f"buffer_load_dword v22, v21, s[{SDBG}:{SDBG+3}], 0 offen sc1"); E("s_waitcnt vmcnt(0)")
                E(f"v_readfirstlane_b32 s{sT0}, v22"); E(f"s_add_u32 s{sT1}, s{sT1}, 1")
                E(f"s_cmp_ge_u32 s{sT0}, 8"); E(f"s_cbranch_scc1 L_polld_{name}")
                E("s_sleep 2"); E(f"s_cmp_lt_u32 s{sT1}, 0x200000"); E(f"s_cbranch_scc1 L_poll_{name}")
                E(f"L_polld_{name}:")
                E("buffer_inv sc1"); E("s_waitcnt vmcnt(0)")
            else:
                E("s_waitcnt vmcnt(8)")
            E("s_barrier")
    ni = len(L)
    idle(0); E(f"s_cmp_eq_u32 s{sW}, 3"); E(f"s_cbranch_scc1 L_head1_{name}")
    n_i0 = len(L)
    idle(1); E(f"s_cmp_eq_u32 s{sW}, 2"); E(f"s_cbranch_scc1 L_head0_{name}")
    n_i1 = len(L)
    idle(0); E(f"s_cmp_eq_u32 s{sW}, 1"); E(f"s_cbranch_scc1 L_head1_{name}")
    idle(1, gate=True)
    N_ = (None, None, None); F_ = ('full', 'full', True)
    zero = [f"v_mov_b64 {V(O0+2*r,2)}, 0" for r in range(32)]
    def head(p0):
        p = p0; out = []
        seq = [({0: N_, 1: ('diag', None, None)}, zero[:8]), ({0: N_, 1: ('full', 'diag', None)}, ()), ({0: N_, 1: ('full', 'full', 'first')}, ()),
               ({0: N_, 1: F_}, ()), ({0: ('diag', None, None), 1: F_}, zero[8:]), ({0: ('full', 'diag', None), 1: F_}, ())]
        for cfg, ex in seq:
            b = p3_body(p, cfg, extra=list(ex)); out.append(b); p ^= 1
        return out
    H0, H1 = head(0), head(1)
    G2o = p3_body(1, {0: F_, 1: F_}); G2e = p3_body(0, {0: F_, 1: F_}, tail=[f"s_cmp_lg_u32 s{sN}, s{sEnd2}", f"s_cbranch_scc1 L_g2o_{name}"])
    DA1 = p3_body(1, {0: (None, 'full', True), 1: F_}); DA2 = p3_body(0, {0: (None, None, True), 1: F_})
    G1o = p3_body(1, {0: N_, 1: F_}); G1e = p3_body(0, {0: N_, 1: F_}, tail=[f"s_cmp_lg_u32 s{sN}, s{sEnd1}", f"s_cbranch_scc1 L_g1o_{name}"])
    DB1 = p3_body(1, {0: N_, 1: (None, 'full', True)}, dma_on=False, kr=False); DB2 = p3_body(0, {0: N_, 1: (None, None, True)}, dma_on=False, kr=False)
    DC1 = p3_body(1, {0: (None, 'full', True), 1: (None, 'full', True)}, dma_on=False, kr=False)
    DC2 = p3_body(0, {0: (None, None, True), 1: (None, None, True)}, dma_on=False, kr=False)
    E(f"L_head0_{name}:")
    for b in H0: L += b.lines()
    E(f"s_cmp_gt_u32 s{sN}, s{sEnd2}"); E(f"s_cbranch_scc1 L_da2_{name}"); E(f"s_branch L_g2e_{name}")
    E(f"L_head1_{name}:")
    for b in H1: L += b.lines()
    E(f"s_cmp_eq_u32 s{sN}, s{sEnd2}"); E(f"s_cbranch_scc1 L_g2x_{name}")
    E(f"L_g2o_{name}:"); L += G2o.lines(); E(f"L_g2e_{name}:"); L += G2e.lines()
    E(f"L_g2x_{name}:")
    E(f"s_cmp_eq_u32 s{sJ}, 7"); E(f"s_cbranch_scc1 L_dc_{name}")
    L += DA1.lines(); E(f"L_da2_{name}:"); L += DA2.lines()
    EA = []; epilogue(EA.append, 0, sCA, sBadA); EB = []; epilogue(EB.append, 1, sCB, sBadB)
    L += EA
    E(f"L_g1o_{name}:"); L += G1o.lines(); L += G1e.lines()
    L += DB1.lines(); L += DB2.lines()
    E(f"L_eb_{name}:")
    L += EB
    if force_slow: E(f"s_mov_b64 s[{sBadA}:{sBadA+1}], 1"); E(f"s_mov_b64 s[{sBadB}:{sBadB+1}], 1")
    E(f"s_or_b64 s[{sT0}:{sT1}], s[{sBadA}:{sBadA+1}], s[{sBadB}:{sBadB+1}]"); E(f"s_cbranch_scc1 L_fix_{name}")
    E(f"L_end_{name}:"); E("s_endpgm")
    E(f"L_dc_{name}:"); L += DC1.lines(); L += DC2.lines(); L += EA; E(f"s_branch L_eb_{name}")
    p1_stub(E, name + "K"); p1_stub(E, name + "V")
    E(f"L_fix_{name}:")
    E(f"s_cmp_eq_u64 s[{sBadA}:{sBadA+1}], 0"); E(f"s_cbranch_scc1 L_fixb_{name}")
    E(f"s_lshl_b32 s{sLast}, s{sJ}, 2"); E(f"s_add_u32 s{sLast}, s{sLast}, s{sW}"); E(f"s_mov_b32 s{sCS}, s{sCA}")
    ns = len(L)
    slow_path(E, name)
    SL = L[ns:]
    E(f"L_fixb_{name}:")
    E(f"s_cmp_eq_u64 s[{sBadB}:{sBadB+1}], 0"); E(f"s_cbranch_scc1 L_end2_{name}")
    E(f"s_mov_b64 s[{sBadB}:{sBadB+1}], 0")
    for r in range(32): E(f"v_accvgpr_mov_b32 a{aQ+r}, a{aQ+32+r}")
    E(f"s_sub_u32 s{sLast}, 15, s{sJ}"); E(f"s_lshl_b32 s{sLast}, s{sLast}, 2"); E(f"s_add_u32 s{sLast}, s{sLast}, s{sW}"); E(f"s_mov_b32 s{sCS}, s{sCB}")
    E(f"s_branch L_slow_{name}")
    E(f"L_end2_{name}:"); E("s_endpgm")
    ln = lambda bs: [t for b in bs for t in b.lines()]
    p2all = L[n2:ni]
    traces = {
        'K': pro + BK.lines() * 2 + p2all + L[ni:n_i0] + ln(H1) + ln([G2o, G2e, G2o, G2e, DA1, DA2]) + EA + ln([G1o, G1e, G1o, G1e, DB1, DB2]) + EB + SL + SL,
        'V': pro + BV.lines() * 2 + p2all + L[ni:n_i1] + ln(H0) + ln([G2e, DC1, DC2]) + EA + EB,
        'c1': L[ni:n_i1] + ln(H0) + ln([DA2]) + EA + ln([G1o]),
        'c2': L[ni:n_i0] + ln(H1) + ln([DA1, DA2]),
    }
    for k, tr in traces.items():
        probs += check_hazards(tr, k) + check_lgkm(tr, k)
    if verbose:
        for nm, b in [('P1K', BK), ('P2', B2), ('G2o', G2o), ('G2e', G2e), ('G1o', G1o), ('G1e', G1e), ('DA1', DA1), ('DA2', DA2), ('DB1', DB1), ('DB2', DB2)] + [(f'H1{i}', b) for i, b in enumerate(H1)]:
            print(nm, 'mfma', b.n, 'overflow', b.overflow())
    for p in sorted(set(probs)): print("PROB", p)
    return L
```

```python
from fw import *
from k12 import MF, srd, f2u, WS_CTX, WS_UT, WS_YT, WS_G, rset
import math

LOG2E = math.log2(math.e)

def prep_u(E, sTask, SK, SVv, SSH, SUT, vb, s0, s1):
    E(f"s_mul_i32 s{s0}, s{sTask}, 7282"); E(f"s_lshr_b32 s{s0}, s{s0}, 16")
    E(f"s_mul_i32 s{s1}, s{s0}, 9"); E(f"s_sub_u32 s{s1}, s{sTask}, s{s1}")
    a = vb
    KR = vb + 12
    VR = KR + 28
    WR = VR + 16
    T = WR + 16
    E(f"s_lshl_b32 s{s0}, s{s0}, 5"); E(f"s_lshl_b32 s{s1}, s{s1}, 6")
    E(f"v_lshrrev_b32 v{a}, 3, v0"); E(f"v_lshlrev_b32 v{a}, 2, v{a}"); E(f"v_add_u32 v{a}, s{s0}, v{a}")
    E(f"v_and_b32 v{a+1}, 7, v0"); E(f"v_lshlrev_b32 v{a+1}, 3, v{a+1}"); E(f"v_add_u32 v{a+1}, s{s1}, v{a+1}")
    E(f"v_mul_u32_u24 v{a+2}, 1152, v{a}"); E(f"v_lshl_add_u32 v{a+2}, v{a+1}, 1, v{a+2}")
    for t in range(3): E(f"v_subrev_u32 v{a+3+t}, {1152*(3-t)}, v{a+2}")
    for t in range(3): E(f"buffer_load_dwordx4 {V(KR+4*t,4)}, v{a+3+t}, s[{SK}:{SK+3}], 0 offen")
    for t in range(4): E(f"buffer_load_dwordx4 {V(KR+12+4*t,4)}, v{a+2}, s[{SK}:{SK+3}], 0 offen offset:{1152*t}")
    E(f"v_lshlrev_b32 v{a+6}, 3, v{a+1}")
    for t in range(4): E(f"buffer_load_dwordx4 {V(WR+4*t,4)}, v{a+6}, s[{SSH}:{SSH+3}], 0 offen offset:{16*t}")
    for t in range(4): E(f"buffer_load_dwordx4 {V(VR+4*t,4)}, v{a+2}, s[{SVv}:{SVv+3}], 0 offen offset:{1152*t}")
    E(f"v_sub_u32 v{a+7}, 2044, v{a}"); E(f"v_lshlrev_b32 v{a+7}, 1, v{a+7}"); E(f"v_lshl_add_u32 v{a+7}, v{a+1}, 12, v{a+7}")
    comp = []; C = comp.append
    def unp(dst, src, hi): C(f"v_and_b32 v{dst}, 0xffff0000, v{src}" if hi else f"v_lshlrev_b32 v{dst}, 16, v{src}")
    for e in range(8):
        kk, ww, acc, vv = T, T + 7, T + 11, T + 15
        pk = T + 16 + (e & 1) * 2
        for t in range(7): unp(kk + t, KR + 4 * t + e // 2, e & 1)
        for t in range(4): unp(ww + t, WR + 2 * e + t // 2, t & 1)
        for r in range(4):
            C(f"v_mul_f32 v{acc+r}, v{kk+r}, v{ww+3}")
            for tau in (2, 1, 0): C(f"v_fmac_f32 v{acc+r}, v{kk+r+3-tau}, v{ww+tau}")
            unp(vv, VR + 4 * r + e // 2, e & 1)
            C(f"v_mul_f32 v{acc+r}, v{acc+r}, v{vv}")
        C(f"v_cvt_pk_bf16_f32 v{pk}, v{acc+3}, v{acc+2}"); C(f"v_cvt_pk_bf16_f32 v{pk+1}, v{acc+1}, v{acc}")
        C(f"buffer_store_dwordx2 {V(pk,2)}, v{a+7}, s[{SUT}:{SUT+3}], 0 offen")
        if e < 7: C(f"v_add_u32 v{a+7}, 4096, v{a+7}")
    return comp

def prep_g(E, sRow0, SXx, SGW, SG, vb):
    a = vb; XR = vb + 4; GR = XR + 36
    E(f"v_lshrrev_b32 v{a}, 3, v0"); E(f"v_add_u32 v{a}, s{sRow0}, v{a}")
    E(f"v_and_b32 v{a+1}, 7, v0"); E(f"v_lshlrev_b32 v{a+1}, 4, v{a+1}")
    E(f"v_mul_u32_u24 v{a+2}, 1152, v{a}"); E(f"v_add_u32 v{a+2}, v{a+2}, v{a+1}")
    for i in range(9): E(f"buffer_load_dwordx4 {V(XR+4*i,4)}, v{a+2}, s[{SXx}:{SXx+3}], 0 offen offset:{128*i}")
    for i in range(9): E(f"buffer_load_dwordx4 {V(GR+4*i,4)}, v{a+1}, s[{SGW}:{SGW+3}], 0 offen offset:{128*i}")
    comp = []; C = comp.append
    T = GR + 36
    C(f"v_mov_b32 v{T}, 0"); C(f"v_mov_b32 v{T+1}, 0")
    for i in range(36):
        C(f"v_lshlrev_b32 v{T+2}, 16, v{XR+i}"); C(f"v_lshlrev_b32 v{T+3}, 16, v{GR+i}"); C(f"v_fmac_f32 v{T}, v{T+2}, v{T+3}")
        C(f"v_and_b32 v{T+2}, 0xffff0000, v{XR+i}"); C(f"v_and_b32 v{T+3}, 0xffff0000, v{GR+i}"); C(f"v_fmac_f32 v{T+1}, v{T+2}, v{T+3}")
    C(f"v_add_f32 v{T}, v{T}, v{T+1}")
    for m in ("quad_perm:[1,0,3,2]", "quad_perm:[2,3,0,1]", "row_half_mirror"):
        C("s_nop 1"); C(f"v_add_f32_dpp v{T}, v{T}, v{T} {m} row_mask:0xf bank_mask:0xf")
    C(f"v_mul_f32 v{T}, 0x{f2u(-LOG2E):x}, v{T}"); C(f"v_exp_f32 v{T}, v{T}"); C("s_nop 0"); C(f"v_add_f32 v{T}, 1.0, v{T}")
    C(f"v_rcp_f32 v{T}, v{T}"); C(f"v_lshlrev_b32 v{a}, 2, v{a}")
    C(f"buffer_store_dword v{T}, v{a}, s[{SG}:{SG+3}], 0 offen")
    return comp

def gen_k0(name):
    L = []; E = L.append
    E(".p2align 8"); E(f".type {name},@function"); E(f"{name}:")
    E(f"s_cmp_ge_u32 s2, 256"); E(f"s_cbranch_scc1 L_end_{name}")
    E("s_load_dwordx8 s[40:47], s[0:1], 0")
    E("s_load_dwordx2 s[48:49], s[0:1], 96"); E("s_load_dwordx2 s[50:51], s[0:1], 120")
    E("v_lshrrev_b32 v1, 6, v0"); E("v_and_b32 v0, 63, v0"); E("v_readfirstlane_b32 s3, v1")
    E("s_waitcnt lgkmcnt(0)")
    srd(E, 8, 40, 2048 * 1152); srd(E, 12, 42, 2048 * 1152); srd(E, 16, 44, 2048 * 1152); srd(E, 20, 46, 576 * 8); srd(E, 24, 48, 1152)
    E(f"s_add_u32 s52, s50, {WS_UT}"); E("s_addc_u32 s53, s51, 0"); srd(E, 28, 52, 576 * 4096)
    E(f"s_add_u32 s52, s50, {WS_G}"); E("s_addc_u32 s53, s51, 0"); srd(E, 32, 52, 8192)
    E("s_cmp_eq_u32 s3, 3"); E(f"s_cbranch_scc1 L_g_{name}")
    E("s_lshl_b32 s4, s3, 8"); E("s_add_u32 s4, s4, s2"); E("s_cmp_ge_u32 s4, 576"); E(f"s_cbranch_scc1 L_end_{name}")
    c = prep_u(E, 4, 12, 16, 20, 28, 4, 5, 6)
    E("s_waitcnt vmcnt(0)"); L += c
    E("s_endpgm")
    E(f"L_g_{name}:")
    E("s_lshl_b32 s4, s2, 3")
    c = prep_g(E, 4, 8, 24, 32, 4)
    E("s_waitcnt vmcnt(0)"); L += c
    E(f"L_end_{name}:"); E("s_endpgm")
    for p in check_hazards(L, name): print("PROB", p)
    return L

HSZ = 4160; USZ = 4608; CH = 2 * HSZ + USZ
RED9 = 9 * CH
def gen_k3(name):
    L = []; E = L.append
    probs = []
    sW, sX, sI = 3, 4, 5
    E(".p2align 8"); E(f".type {name},@function"); E(f"{name}:")
    E(f"s_cmp_ge_u32 s2, 256"); E(f"s_cbranch_scc1 L_end_{name}")
    E("s_load_dwordx2 s[60:61], s[0:1], 0")
    E("s_load_dwordx4 s[64:67], s[0:1], 32")
    E("s_load_dwordx2 s[62:63], s[0:1], 88")
    E("s_load_dwordx2 s[68:69], s[0:1], 104")
    E("s_load_dwordx4 s[72:75], s[0:1], 112")
    E("v_lshrrev_b32 v1, 6, v0"); E("v_and_b32 v0, 63, v0"); E(f"v_readfirstlane_b32 s{sW}, v1")
    E(f"s_and_b32 s{sX}, s2, 7"); E(f"s_lshr_b32 s{sI}, s2, 3")
    E("v_lshlrev_b32 v1, 4, v0"); E("v_lshrrev_b32 v2, 4, v0"); E("v_and_b32 v3, 15, v0")
    E("s_waitcnt lgkmcnt(0)")
    SDBG, SYT = 8, 12
    srd(E, SDBG, 72, 256)
    E(f"s_add_u32 s76, s74, {WS_YT}"); E("s_addc_u32 s77, s75, 0"); srd(E, SYT, 76, 576 * 4096)
    E(f"s_cmp_lt_u32 s{sI}, 8"); E(f"s_cbranch_scc1 L_conv_{name}")
    n_common = len(L)
    SCT, SWO, SXx, SG, SO = 16, 20, 24, 28, 32
    sRB, sCB, sCO, sWO, sM, sCnt, sT0, sT1 = 36, 37, 38, 39, 40, 41, 42, 43
    E(f"s_sub_u32 s{sI}, s{sI}, 8"); E(f"s_mul_i32 s{sT0}, s{sI}, 43"); E(f"s_lshr_b32 s{sT0}, s{sT0}, 8")
    E(f"s_mul_i32 s{sT1}, s{sT0}, 6"); E(f"s_sub_u32 s{sCB}, s{sI}, s{sT1}")
    E(f"s_lshl_b32 s{sRB}, s{sX}, 2"); E(f"s_add_u32 s{sRB}, s{sRB}, s{sT0}")
    E(f"s_lshl_b32 s{sT0}, s{sRB}, 19"); E(f"s_lshl_b32 s{sT1}, s{sW}, 17"); E(f"s_add_u32 s{sT0}, s{sT0}, s{sT1}")
    E(f"s_add_u32 s{sT0}, s{sT0}, {WS_CTX}"); E(f"s_add_u32 s76, s74, s{sT0}"); E("s_addc_u32 s77, s75, 0"); srd(E, SCT, 76, 1 << 17)
    E(f"s_mul_i32 s{sT0}, s{sW}, {1024*1152}"); E(f"s_add_u32 s76, s62, s{sT0}"); E("s_addc_u32 s77, s63, 0"); srd(E, SWO, 76, 1024 * 1152)
    srd(E, SXx, 60, 2048 * 1152); srd(E, SO, 68, 2048 * 1152)
    E(f"s_add_u32 s76, s74, {WS_G}"); E("s_addc_u32 s77, s75, 0"); srd(E, SG, 76, 8192)
    vOW, vRA, vXA, vYA, vYW, vYR = 4, 10, 12, 13, 14, 15
    XR, GV = 16, 28
    CT, WF, AC = 32, 96, 144
    for i in range(6):
        E(f"v_add_u32 v30, {64*i}, v0"); E("v_mul_u32_u24 v31, 5462, v30"); E("v_lshrrev_b32 v31, 16, v31")
        E("v_mul_u32_u24 v29, 12, v31"); E("v_sub_u32 v30, v30, v29")
        E("v_lshrrev_b32 v29, 1, v31"); E("v_and_b32 v29, 2, v29"); E("v_xor_b32 v30, v30, v29")
        E("v_lshlrev_b32 v30, 4, v30"); E("v_mul_u32_u24 v31, 1152, v31"); E(f"v_add_u32 v{vOW+i}, v30, v31")
        if i % 4: E(f"v_subrev_u32 v{vOW+i}, {1024*(i%4)}, v{vOW+i}")
    E(f"s_mul_i32 s{sWO}, s{sCB}, 192"); E(f"s_mov_b32 s{sCO}, 0"); E(f"s_mul_i32 s{sM}, s{sW}, 24576")
    def wdma(slot):
        out = []
        for i in range(6):
            pre = f"s_add_u32 m0, s{sM}, {slot*6144 + (4096 if i >= 4 else 0)}" if i in (0, 4) else None
            out.append((pre, f"buffer_load_dwordx4 v{vOW+i}, s[{SWO}:{SWO+3}], s{sWO} offen offset:{(i%4)*1024} lds"))
        return out
    def cld(slot): return [f"buffer_load_dwordx4 {V(CT+slot*16+4*q,4)}, v1, s[{SCT}:{SCT+3}], s{sCO} offen offset:{q*1024}" for q in range(4)]
    def emit_w(slot):
        for pre, t in wdma(slot):
            if pre: E(pre); E("s_nop 0")
            E(t)
        E(f"s_add_u32 s{sWO}, s{sWO}, {32*1152}")
    def emit_c(slot):
        for t in cld(slot): E(t)
        E(f"s_add_u32 s{sCO}, s{sCO}, 4096")
    emit_w(0)
    for k in range(3): emit_w(k + 1); emit_c(k)
    E(f"s_lshl_b32 s{sT0}, s{sRB}, 6"); E(f"s_lshl_b32 s{sT1}, s{sW}, 4"); E(f"s_add_u32 s{sT0}, s{sT0}, s{sT1}")
    E(f"v_add_u32 v30, s{sT0}, v3")
    E(f"v_mul_u32_u24 v{vXA}, 1152, v30"); E(f"v_lshl_add_u32 v{vXA}, v2, 3, v{vXA}")
    E(f"s_mul_i32 s{sT1}, s{sCB}, 192"); E(f"v_add_u32 v{vXA}, s{sT1}, v{vXA}")
    E("v_lshlrev_b32 v30, 2, v30")
    for mt in range(6): E(f"buffer_load_dwordx2 {V(XR+2*mt,2)}, v{vXA}, s[{SXx}:{SXx+3}], 0 offen offset:{mt*32}")
    E(f"buffer_load_dword v{GV}, v30, s[{SG}:{SG+3}], 0 offen")
    E("v_lshrrev_b32 v30, 2, v0"); E("v_mul_u32_u24 v31, 192, v30"); E("v_and_b32 v29, 3, v0"); E("v_lshl_add_u32 v31, v29, 3, v31")
    E(f"v_add_u32 v31, s{sM}, v31"); E(f"v_and_b32 v{vRA}, 1, v2"); E(f"v_lshlrev_b32 v{vRA}, 5, v{vRA}")
    E(f"v_sub_u32 v{vRA+1}, v31, v{vRA}"); E(f"v_add_u32 v{vRA}, v31, v{vRA}")
    YL = 98304
    E(f"s_mul_i32 s{sT0}, s{sCB}, 96"); E(f"s_mul_i32 s{sT1}, s{sW}, 24"); E(f"s_add_u32 s{sT0}, s{sT0}, s{sT1}")
    E(f"v_lshrrev_b32 v31, 3, v0"); E(f"v_add_u32 v31, s{sT0}, v31"); E(f"v_lshlrev_b32 v{vYA}, 12, v31")
    E("v_and_b32 v31, 7, v0"); E(f"v_lshl_add_u32 v{vYA}, v31, 4, v{vYA}"); E(f"s_lshl_b32 s{sT0}, s{sRB}, 7"); E(f"v_add_u32 v{vYA}, s{sT0}, v{vYA}")
    E(f"s_mul_i32 s{sT1}, s{sW}, 3072"); E(f"s_add_u32 s{sT1}, s{sT1}, {YL}"); E(f"v_add_u32 v{vYW}, s{sT1}, v1")
    E(f"v_lshlrev_b32 v{vYR}, 7, v30"); E(f"v_lshl_add_u32 v{vYR}, v29, 3, v{vYR}")
    E(f"s_lshl_b32 s{sT1}, s{sW}, 5"); E(f"s_add_u32 s{sT1}, s{sT1}, {YL}"); E(f"v_add_u32 v{vYR}, s{sT1}, v{vYR}")
    for r in range(96): E(f"v_mov_b32 v{AC+r}, 0")
    def wrd(slot, buf):
        return [f"ds_read_b64_tr_b16 {V(WF+buf*24+mt*4+hf*2,2)}, v{vRA+(mt&1)} offset:{slot*6144 + hf*16*192 + mt*32}" for mt in range(6) for hf in range(2)]
    E("s_waitcnt vmcnt(37)")
    for t in wrd(0, 0): E(t)
    E(f"s_mov_b32 s{sCnt}, 0")
    E("s_waitcnt vmcnt(0)")
    pro_o = L[:]
    bodies = []
    for u in range(4):
        mf = []
        for mt in range(6):
            for qt in range(4):
                d = V(AC + (mt * 4 + qt) * 4, 4)
                mf.append(f"{MF} {d}, {V(WF+(u&1)*24+mt*4,4)}, {V(CT+u*16+qt*4,4)}, {d}")
        B = Body(mf)
        B.pre.append("s_waitcnt vmcnt(20) lgkmcnt(0)")
        g = 0
        for t in wrd((u + 1) % 4, (u + 1) & 1): g = B.mem(g, t) + 1
        g = 12
        for t in cld((u + 3) % 4): g = B.mem(g, t) + 1
        B.put(g - 1, f"s_add_u32 s{sCO}, s{sCO}, 4096")
        for pre, t in wdma(u):
            if pre: B.put(g - 1, pre)
            g = B.mem(g, t) + 1
        B.put(g - 1, f"s_add_u32 s{sWO}, s{sWO}, {32*1152}")
        if u == 3:
            B.put(22, f"s_add_u32 s{sCnt}, s{sCnt}, 1"); B.put(22, f"s_cmp_lt_u32 s{sCnt}, 8"); B.put(23, f"s_cbranch_scc1 L_op_{name}")
        bodies.append(B)
    E(".p2align 6"); E(f"L_op_{name}:")
    lo = [t for b in bodies for t in b.lines()]
    L += lo
    n1 = len(L)
    E("v_lshlrev_b32 v30, 2, v0"); E(f"s_mov_b32 s{sT1}, 0")
    E(f"L_poll_{name}:")
    E(f"buffer_load_dword v31, v30, s[{SDBG}:{SDBG+3}], 0 offen sc1"); E("s_waitcnt vmcnt(0) lgkmcnt(0)")
    E("v_cmp_eq_u32 vcc, 0, v31"); E(f"s_add_u32 s{sT1}, s{sT1}, 1"); E(f"s_cbranch_vccz L_polld_{name}")
    E("s_sleep 2"); E(f"s_cmp_lt_u32 s{sT1}, 0x200000"); E(f"s_cbranch_scc1 L_poll_{name}")
    E(f"L_polld_{name}:")
    for i in range(3):
        E(f"buffer_load_dwordx4 {V(CT+4*i,4)}, v{vYA}, s[{SYT}:{SYT+3}], 0 offen sc1")
        if i < 2: E(f"v_add_u32 v{vYA}, {8*4096}, v{vYA}")
    E("s_barrier")
    E(f"s_mul_i32 s{sT0}, s{sW}, 6144"); E(f"v_add_u32 v30, s{sT0}, v1"); E(f"v_add_u32 v31, {2*24576}, v30"); E(f"v_add_u32 v29, s{sM}, v1")
    for qt in range(4):
        for mt in range(6):
            E(f"ds_write_b128 v{30 + qt//2}, {V(AC+(mt*4+qt)*4,4)} offset:{(qt&1)*24576 + mt*1024}")
    E("s_waitcnt vmcnt(0)")
    for i in range(3): E(f"ds_write_b128 v{vYW}, {V(CT+4*i,4)} offset:{i*1024}")
    E("s_waitcnt lgkmcnt(0)"); E("s_barrier")
    for mt in range(6):
        for sw in range(4): E(f"ds_read_b128 {V(AC+(mt*4+sw)*4,4)}, v29 offset:{sw*6144 + mt*1024}")
        E(f"ds_read_b64_tr_b16 {V(WF+2*mt,2)}, v{vYR} offset:{mt*2048}")
        if mt == 2: E("s_waitcnt lgkmcnt(0)")
    E(f"v_sub_f32 v30, 1.0, v{GV}")
    E("s_waitcnt lgkmcnt(0)")
    T = CT + 16
    for mt in range(6):
        b = AC + mt * 16
        for r in range(4):
            E(f"v_add_f32 v{b+r}, v{b+r}, v{b+4+r}"); E(f"v_add_f32 v{b+8+r}, v{b+8+r}, v{b+12+r}"); E(f"v_add_f32 v{b+r}, v{b+r}, v{b+8+r}")
            xs = XR + 2 * mt + r // 2; ys = WF + 2 * mt + r // 2
            if r & 1: E(f"v_and_b32 v{T}, 0xffff0000, v{xs}"); E(f"v_and_b32 v{T+1}, 0xffff0000, v{ys}")
            else: E(f"v_lshlrev_b32 v{T}, 16, v{xs}"); E(f"v_lshlrev_b32 v{T+1}, 16, v{ys}")
            E(f"v_mul_f32 v{T}, v{T}, v{T+1}"); E(f"v_mul_f32 v{T}, v{T}, v{GV}"); E(f"v_fma_f32 v{b+r}, v{b+r}, v30, v{T}")
        E(f"v_cvt_pk_bf16_f32 v{b}, v{b}, v{b+1}"); E(f"v_cvt_pk_bf16_f32 v{b+1}, v{b+2}, v{b+3}")
        E(f"buffer_store_dwordx2 {V(b,2)}, v{vXA}, s[{SO}:{SO+3}], 0 offen offset:{mt*32}")
    E(f"L_end_{name}:"); E("s_endpgm")
    tr = pro_o + lo + lo + L[n1:]
    probs += check_hazards(tr, 'op') + check_lgkm(tr, 'op')
    nc = len(L)
    E(f"L_conv_{name}:")
    SH, SU, SD = 16, 20, 24
    sC0, sJob, sDel, sYO, sUO = 36, 37, 38, 39, 40
    E(f"s_lshl_b32 s{sX}, s{sX}, 3"); E(f"s_add_u32 s{sI}, s{sI}, s{sX}")
    E(f"s_mul_i32 s{sC0}, s{sI}, 9")
    srd(E, SH, 64, 576 * 4096); srd(E, SD, 66, 1152)
    E(f"s_add_u32 s76, s74, {WS_UT}"); E("s_addc_u32 s77, s75, 0"); srd(E, SU, 76, 576 * 4096)
    E("v_add_u32 v4, 2, v1")
    def ldch(sch, slds, ks, extra=0):
        for (vo, sr, off) in ((1, SH, 32), (4, SH, HSZ + 32), (1, SU, 2 * HSZ)):
            E(f"s_add_u32 m0, s{slds}, {off}"); E("s_nop 0")
            for k in ks: E(f"buffer_load_dwordx4 v{vo}, s[{sr}:{sr+3}], s{sch} offen offset:{k*1024} lds")
    E(f"s_lshl_b32 s{sT0}, s{sW}, 1"); E(f"s_add_u32 s44, s{sC0}, s{sT0}"); E("s_lshl_b32 s44, s44, 12"); E(f"s_mul_i32 s45, s{sT0}, {CH}")
    E(f"s_mov_b32 s{sYO}, s44"); E(f"s_mov_b32 s{sUO}, s45")
    ldch(44, 45, range(4))
    E("s_add_u32 s44, s44, 4096"); E(f"s_add_u32 s45, s45, {CH}")
    ldch(44, 45, range(4))
    E(f"s_add_u32 s44, s{sC0}, 8"); E("s_lshl_b32 s44, s44, 12"); E(f"s_lshl_b32 s{sT0}, s{sW}, 10"); E(f"s_add_u32 s44, s44, s{sT0}")
    E(f"s_add_u32 s45, s{sT0}, {8*CH}")
    ldch(44, 45, [0])
    E(f"v_add_u32 v5, s{sC0}, v0"); E("v_lshlrev_b32 v6, 12, v5"); E("v_lshlrev_b32 v5, 1, v5")
    E(f"buffer_load_ushort v7, v6, s[{SH}:{SH+3}], 0 offen"); E(f"buffer_load_ushort v8, v5, s[{SD}:{SD+3}], 0 offen")
    for r in range(4): E(f"v_mov_b32 v{12+r}, 0")
    E(f"v_add_u32 v9, {2*HSZ+4096}, v1")
    E("v_subrev_u32 v10, 32, v0"); E("v_and_b32 v11, 1, v10"); E("v_lshlrev_b32 v11, 4, v11"); E("v_lshrrev_b32 v10, 1, v10")
    E(f"v_and_b32 v10, 1, v10"); E(f"v_mul_u32_u24 v10, {HSZ}, v10"); E("v_add_u32 v10, v10, v11")
    E("v_cmp_gt_u32 vcc, 32, v0"); E("s_nop 1"); E("v_cndmask_b32 v9, v10, v9, vcc")
    E(f"v_add_u32 v10, {5*CH}, v9")
    for c in range(9): E(f"ds_write_b128 v{9 if c < 5 else 10}, v[12:15] offset:{(c%5)*CH}")
    E("s_waitcnt vmcnt(0) lgkmcnt(0)"); E("s_barrier")
    E("v_lshlrev_b32 v7, 16, v7"); E("v_lshlrev_b32 v8, 16, v8")
    E(f"v_min_u32 v5, 8, v0"); E(f"v_mul_u32_u24 v5, {CH}, v5")
    E("v_cmp_gt_u32 vcc, 9, v0"); E("s_and_saveexec_b64 s[46:47], vcc")
    E(f"ds_write_b32 v5, v7 offset:{HSZ+28}")
    E("s_mov_b64 exec, s[46:47]")
    vA, vB, vU, vY = 16, 20, 21, 22
    AF, BF, D0, T = 32, 64, 96, 128
    E("v_and_b32 v5, 1, v3"); E("v_add_u32 v6, v3, v5"); E("v_lshl_add_u32 v6, v2, 3, v6"); E("v_lshlrev_b32 v6, 1, v6")
    E("v_xor_b32 v5, 1, v5"); E(f"v_mul_u32_u24 v5, {HSZ}, v5"); E("v_add_u32 v6, v6, v5"); E(f"v_add_u32 v{vA}, s{sUO}, v6")
    for k in range(1, 4): E(f"v_add_u32 v{vA+k}, {1024*k}, v{vA}")
    E("v_lshlrev_b32 v5, 4, v2"); E("v_lshlrev_b32 v6, 5, v3"); E("v_sub_u32 v5, v5, v6"); E(f"v_add_u32 v5, {2*HSZ+480}, v5"); E(f"v_add_u32 v{vB}, s{sUO}, v5")
    E("v_lshl_add_u32 v5, v2, 3, v6"); E(f"v_mov_b32 v{vY}, v5"); E(f"v_sub_u32 v{vU}, {2*HSZ+504}, v5")
    def ard(a): return [f"ds_read2_b32 {V(AF+4*a+2*h,2)}, v{vA+a//2} offset0:{(a&1)*128+2*h} offset1:{(a&1)*128+2*h+1}" for h in range(2)]
    def brd(b): return f"ds_read_b128 {V(BF+4*b,4)}, v{vB} offset:{(7-b)*512}"
    E("s_waitcnt lgkmcnt(0)"); E("s_barrier")
    order0 = [t for a in range(7, 0, -1) for t in ard(a)] + [brd(b) for b in range(8)] + ard(0)
    for k, t in enumerate(order0):
        E(t)
        if k == 11: E("s_waitcnt lgkmcnt(0)")
    E(f"s_mov_b32 s{sJob}, 0")
    E(f"L_cch_{name}:")
    for r in range(32): E(f"v_mov_b32 v{D0+r}, 0")
    pro_c = L[:n_common] + L[nc:]
    mf = []; lastA = {}; lastB = {}
    for a in range(7, -1, -1):
        for b in range(8 - a):
            d = V(D0 + 4 * (a + b), 4)
            lastA[a] = len(mf); lastB[b] = len(mf)
            mf.append(f"{MF} {d}, {V(AF+4*a,4)}, {V(BF+4*b,4)}, {d}")
    B = Body(mf)
    B.pre += [f"s_add_u32 s{sJob}, s{sJob}, 1", f"s_mov_b32 s{sDel}, 64", f"s_cmp_eq_u32 s{sJob}, 8", f"s_cselect_b32 s{sDel}, {CH-448}, s{sDel}",
              f"s_cmp_eq_u32 s{sJob}, 16", f"s_cselect_b32 s{sDel}, s48, s{sDel}", f"s_cmp_eq_u32 s{sJob}, 18", f"s_cselect_b32 s{sDel}, 0, s{sDel}"]
    B.pre += [f"v_add_u32 v{vA+3}, s{sDel}, v{vA+3}"]
    B.put(0, f"v_add_u32 v{vA+2}, s{sDel}, v{vA+2}"); B.put(1, f"v_add_u32 v{vA+1}, s{sDel}, v{vA+1}")
    B.put(2, f"v_add_u32 v{vA}, s{sDel}, v{vA}"); B.put(3, f"v_add_u32 v{vB}, s{sDel}, v{vB}")
    g = 0
    for a in range(7, 0, -1):
        g = max(g, lastA[a])
        for t in ard(a):
            if a == 1: B.put(g, t) if B.first[g] else B.mem(g, t)
            else: g = B.mem(g, t) + 1
    for b in range(8): B.first[lastB[b]] = brd(b)
    for t in ard(0): B.put(35, t)
    B.add_waits([rset(t) for t in order0], minlat=100)
    B.put(35, f"s_and_b32 s{sT0}, s{sJob}, 7"); B.put(35, f"s_cmp_eq_u32 s{sJob}, 18"); B.put(35, f"s_cselect_b32 s{sT0}, 0, s{sT0}")
    B.put(35, f"s_cmp_lg_u32 s{sT0}, 0"); B.put(35, f"s_cbranch_scc1 L_cj_{name}")
    i0 = L.index(f"s_mov_b32 s{sJob}, 0")
    L[i0:i0] = [f"s_lshl_b32 s{sT0}, s{sW}, 1", f"s_mul_i32 s48, s{sT0}, {64-CH}", f"s_add_u32 s48, s48, {7*CH-448}"]
    E(f"L_cj_{name}:"); lb = B.lines(); L += lb
    n2 = len(L)
    def fin(Is, dreg, sLane):
        E(f"v_readlane_b32 s49, v8, s{sLane}"); E(f"v_add_u32 v5, s{sUO}, v{vU}")
        for k, I_ in enumerate(Is): E(f"ds_read_b64 {V(T+2*k,2)}, v5 offset:{(7-I_)*512}")
        E("s_waitcnt lgkmcnt(0)")
        for k, I_ in enumerate(Is):
            d = dreg(k); t = T + 16
            E(f"v_and_b32 v{t}, 0xffff0000, v{T+2*k+1}"); E(f"v_lshlrev_b32 v{t+1}, 16, v{T+2*k+1}")
            E(f"v_and_b32 v{t+2}, 0xffff0000, v{T+2*k}"); E(f"v_lshlrev_b32 v{t+3}, 16, v{T+2*k}")
            for r in range(4): E(f"v_fma_f32 v{t+r}, v{t+r}, s49, v{d+r}")
            E(f"v_cvt_pk_bf16_f32 v{T+2*k}, v{t}, v{t+1}"); E(f"v_cvt_pk_bf16_f32 v{T+2*k+1}, v{t+2}, v{t+3}")
            E(f"buffer_store_dwordx2 {V(T+2*k,2)}, v{vY}, s[{SYT}:{SYT+3}], s{sYO} offen offset:{I_*512} sc1")
    E(f"s_cmp_eq_u32 s{sJob}, 18"); E(f"s_cbranch_scc1 L_c9_{name}")
    E(f"s_lshr_b32 s{sT0}, s{sJob}, 3"); E(f"s_lshl_b32 s{sT1}, s{sW}, 1"); E(f"s_add_u32 s{sT0}, s{sT0}, s{sT1}"); E(f"s_sub_u32 s{sT0}, s{sT0}, 1")
    fin(range(8), lambda k: D0 + 4 * k, sT0)
    E(f"s_add_u32 s{sYO}, s{sYO}, 4096"); E(f"s_add_u32 s{sUO}, s{sUO}, {CH}")
    E(f"s_branch L_cch_{name}")
    n3 = len(L)
    E(f"L_c9_{name}:")
    E(f"s_lshl_b32 s{sT0}, s{sW}, 13"); E(f"s_add_u32 s{sT0}, s{sT0}, {RED9}"); E(f"v_add_u32 v5, s{sT0}, v1")
    E(f"s_lshl_b32 s{sT0}, s{sW}, 11"); E(f"s_add_u32 s{sT0}, s{sT0}, {RED9}"); E(f"v_add_u32 v6, s{sT0}, v1")
    E("s_nop 3")
    for I_ in range(8): E(f"ds_write_b128 v5, {V(D0+4*I_,4)} offset:{I_*1024}")
    E("s_waitcnt lgkmcnt(0)"); E("s_barrier")
    for k in range(2):
        for sw in range(4): E(f"ds_read_b128 {V(D0+16*k+4*sw,4)}, v6 offset:{sw*8192+k*1024}")
    E("s_waitcnt lgkmcnt(0)")
    for k in range(2):
        b = D0 + 16 * k
        for r in range(4):
            E(f"v_add_f32 v{b+r}, v{b+r}, v{b+4+r}"); E(f"v_add_f32 v{b+8+r}, v{b+8+r}, v{b+12+r}"); E(f"v_add_f32 v{b+r}, v{b+r}, v{b+8+r}")
    E(f"s_lshl_b32 s{sT0}, s{sW}, 10"); E(f"s_add_u32 s{sYO}, s{sC0}, 8"); E(f"s_lshl_b32 s{sYO}, s{sYO}, 12"); E(f"s_add_u32 s{sYO}, s{sYO}, s{sT0}")
    E(f"s_sub_u32 s{sUO}, {8*CH}, s{sT0}"); E(f"s_mov_b32 s{sT1}, 8")
    fin(range(2), lambda k: D0 + 16 * k, sT1)
    E("s_waitcnt vmcnt(0)"); E("s_barrier")
    E("v_lshlrev_b32 v5, 12, v0"); E(f"s_lshl_b32 s{sT0}, s{sW}, 12"); E(f"s_lshl_b32 s{sT1}, s{sI}, 2"); E(f"s_add_u32 s{sT0}, s{sT0}, s{sT1}")
    E(f"v_add_u32 v5, s{sT0}, v5"); E("v_mov_b32 v6, 1")
    E(f"buffer_store_dword v6, v5, s[{SDBG}:{SDBG+3}], 0 offen sc1")
    E("s_endpgm")
    zero = [f"v_mov_b32 v{D0+r}, 0" for r in range(32)]
    tr = pro_c + lb + lb + L[n2:n3] + zero + lb + L[n3:]
    probs += check_hazards(tr, 'conv') + check_lgkm(tr, 'conv')
    for p in sorted(set(probs)): print("PROB", p)
    return L
```

```python
import sys
from fw import *
import k12, k3
HDR = open("gated_mix__ssm_conv_h3__compressed_kv_cla__prompt.s.ref").read().split("; Override launch")[0]
def build(path, force_slow=False, verbose=True):
    ks=[]
    ks.append(("prep_kernel",256,256,0,k3.gen_k0("prep_kernel"),128,128))
    ks.append(("k12_kernel",256,256,k12.LDS_BYTES,k12.gen_k12("k12_kernel", force_slow, verbose),512,256))
    ks.append(("k3_kernel",256,256,163840,k3.gen_k3("k3_kernel"),256,256))
    hdr=[f"; @launch kernel={k[0]} grid=({k[1]},1,1) block=({k[2]},1,1) lds={k[3]}" for k in ks]
    out=HDR+"\n".join(hdr)+'\n.amdgcn_target "amdgcn-amd-amdhsa--gfx950"\n.text\n'
    for k in ks: out+="\n".join(k[4])+"\n"
    out+='.section .rodata,"a"\n'+"\n".join(desc(k[0],k[5],k[6]) for k in ks)+"\n"
    open(path,"w").write(out)
if __name__=="__main__":
    build("full.s")
    build("full_slow.s", force_slow=True, verbose=False)
```
